```python
import torch

def _softmax(x, axis=-1):
    return torch.softmax(x, dim=axis)
def _gelu(x):
    return torch.nn.functional.gelu(x, approximate="tanh")
def _silu(x):
    return torch.nn.functional.silu(x)
def _sigmoid(x):
    return torch.sigmoid(x)
def _layernorm(x, axis=-1, eps=1e-5):
    m = x.mean(dim=axis, keepdim=True)
    v = x.var(dim=axis, keepdim=True, unbiased=False)
    return (x - m) / torch.sqrt(v + eps)
def _scatter_add(tgt, idx, src, axis=0):
    return tgt.clone().index_add_(axis, idx, src)
def _segment_sum(src, seg, n):
    out = torch.zeros((n,) + src.shape[1:], dtype=src.dtype)
    return out.index_add_(0, seg, src)
def _pad(x, pw):
    flat = tuple(v for pair in reversed(pw) for v in pair)
    return torch.nn.functional.pad(x, flat)

kernel_name = 'recurrent_scan__ssm_conv_h3__mixer_s_mlp__prompt'

def setup_inputs():

    _w = (lambda a: (lambda t: t.to(torch.bfloat16) if t.is_floating_point() else t)(torch.as_tensor(a)))
    def _A_setup():
        B, S, D = 1, 2048, 640
        ks = 4
        return {
            "q": _w((lambda *s: torch.randn(*s, dtype=torch.bfloat16) * 0.05)(B, S, D)),
            "k": _w((lambda *s: torch.randn(*s, dtype=torch.bfloat16) * 0.2)(B, S, D)),
            "v": _w((lambda *s: torch.randn(*s, dtype=torch.bfloat16) * 0.2)(B, S, D)),
            "shift_k": _w((lambda *s: torch.randn(*s, dtype=torch.bfloat16) * 0.2)(D, ks) * 0.5),
            "ssm_k": _w((lambda *s: torch.randn(*s, dtype=torch.bfloat16) * 0.2)(D, S) * (1.0 / S ** 0.5)),
            "ssm_D": _w((lambda *s: torch.randn(*s, dtype=torch.bfloat16) * 0.2)(D)),
        }
    _A_in = _A_setup()

    def _B_setup():
        B, S, D, F = 1, 2048, 640, 1728
        return {
            "x":  _w((lambda *s: torch.randn(*s, dtype=torch.bfloat16) * 0.05)(B, S, D)),
            "w1": _w((lambda *s: torch.randn(*s, dtype=torch.bfloat16) * 3.2)(D, D) * (D ** -0.5)),
            "w2": _w((lambda *s: torch.randn(*s, dtype=torch.bfloat16) * 3.2)(D, D) * (D ** -0.5)),
            "w3": _w((lambda *s: torch.randn(*s, dtype=torch.bfloat16) * 3.2)(D, F) * (D ** -0.5)),
            "w4": _w((lambda *s: torch.randn(*s, dtype=torch.bfloat16) * 3.2)(F, D) * (F ** -0.5)),
        }
    _B_in = _B_setup()

    return {
        "A_q": _A_in["q"],
        "A_k": _A_in["k"],
        "A_v": _A_in["v"],
        "A_shift_k": _A_in["shift_k"],
        "A_ssm_k": _A_in["ssm_k"],
        "A_ssm_D": _A_in["ssm_D"],
        "B_x": _B_in["x"],
        "B_w1": _B_in["w1"],
        "B_w2": _B_in["w2"],
        "B_w3": _B_in["w3"],
        "B_w4": _B_in["w4"],
    }

def reference(A_q, A_k, A_v, A_shift_k, A_ssm_k, A_ssm_D, B_x, B_w1, B_w2, B_w3, B_w4):
    def _A_ref(q, k, v, shift_k, ssm_k, ssm_D):
        B, S, D = q.shape
        ks = shift_k.shape[-1]
        k_pad = _pad(k, ((0, 0), (ks - 1, 0), (0, 0)))
        k_shift = torch.zeros_like(k)
        for t in range(ks):
            k_shift = k_shift + k_pad[:, t:t + S, :] * shift_k[:, ks - 1 - t][None, None, :]
        kv = k_shift * v
        L = 2 * S
        kv_pad = _pad(kv, ((0, 0), (0, S), (0, 0)))
        kf_pad = _pad(ssm_k, ((0, 0), (0, S)))
        kv_f = (lambda x, axes=(-2,-1): torch.fft.rfft2(x.float(), dim=axes))(kv_pad[:, None, :, :], axes=(1, 2))
        kf_f = (lambda x, axes=(-2,-1): torch.fft.rfft2(x.float(), dim=axes))(kf_pad[:, None, :], axes=(1, 2))
        kf_f = (lambda x, *d: x.permute(*d))(kf_f, 1, 2, 0)
        y_f = kv_f * kf_f[None, :, :, :]
        y = (lambda x, s, axes=(-2,-1): torch.fft.irfft2(x, s=s, dim=axes).to(torch.bfloat16))(y_f, (1, L), axes=(1, 2))[:, 0, :S, :]
        y = y + kv * ssm_D[None, None, :]
        return q * y

    def _B_ref(x, w1, w2, w3, w4):
        B, S, D = x.shape
        h = _gelu(_layernorm(x, axis=-1) @ w1)
        c = D // 4
        g0 = _pad(h[:, :, 0*c:1*c], ((0, 0), (1, 0), (0, 0)))[:, :S, :]
        g1 = _pad(h[:, :, 1*c:2*c], ((0, 0), (0, 1), (0, 0)))[:, 1:, :]
        g2 = _pad(h[:, :, 2*c:3*c], ((0, 0), (2, 0), (0, 0)))[:, :S, :]
        g3 = _pad(h[:, :, 3*c:   ], ((0, 0), (0, 2), (0, 0)))[:, 2:, :]
        hs = torch.concatenate([g0, g1, g2, g3], axis=-1) @ w2
        x1 = x + hs
        h2 = _gelu(_layernorm(x1, axis=-1) @ w3) @ w4
        return x1 + h2

    x = A_q
    xn = _layernorm(x, axis=-1)
    s = _A_ref(xn, A_k, A_v, A_shift_k, A_ssm_k, A_ssm_D)
    g = _silu(_B_ref(xn, B_w1, B_w2, B_w3, B_w4))
    return x + s * g
```

```python
import re

REG_RE = re.compile(r'^(-?)(?:abs\()?\|?([vas])(?:(\d+)|\[(\d+):(\d+)\])\|?\)?$')


def regs_of(tok):
    tok = tok.strip()
    if tok == 'vcc':
        return {('s', 106), ('s', 107)}
    if tok in ('vcc_lo',):
        return {('s', 106)}
    if tok in ('vcc_hi',):
        return {('s', 107)}
    if tok == 'exec':
        return {('s', 126), ('s', 127)}
    if tok == 'm0':
        return {('s', 124)}
    m = REG_RE.match(tok)
    if not m:
        return set()
    f = m.group(2)
    if m.group(3) is not None:
        return {(f, int(m.group(3)))}
    return {(f, i) for i in range(int(m.group(4)), int(m.group(5)) + 1)}


TRANS = ('v_exp_f32', 'v_log_f32', 'v_rcp_f32', 'v_rsq_f32', 'v_sqrt_f32', 'v_sin_f32', 'v_cos_f32', 'v_rcp_iflag_f32')


class Ins:
    __slots__ = ('text', 'op', 'ops', 'mods', 'kind', 'defs', 'uses', 'passes', 'srcc', 'srcab', 'is_label', 'label',
                 'target', 'states', 'dpp', 'wide_store_data', 'lds_dma')

    def __init__(self, text):
        self.text = text
        t = text.split(';')[0].strip()
        self.is_label = t.endswith(':')
        self.label = t[:-1] if self.is_label else None
        self.target = None
        self.defs = set()
        self.uses = set()
        self.srcc = set()
        self.srcab = set()
        self.passes = 0
        self.states = 1
        self.dpp = False
        self.wide_store_data = set()
        self.lds_dma = False
        self.kind = 'other'
        self.op = ''
        if self.is_label or not t or t.startswith('.'):
            self.kind = 'none'
            self.states = 0
            return
        parts = t.split(None, 1)
        op = parts[0]
        self.op = op
        rest = parts[1] if len(parts) > 1 else ''
        ops = []
        depth = 0
        cur = ''
        for ch in rest:
            if ch in '[(':
                depth += 1
            if ch in '])':
                depth -= 1
            if ch == ',' and depth == 0:
                ops.append(cur.strip())
                cur = ''
            else:
                cur += ch
        if cur.strip():
            ops.append(cur.strip())
        mods = ''
        if ops:
            last = ops[-1].split(None, 1)
            if len(last) > 1:
                ops[-1] = last[0]
                mods = last[1]
        self.ops = ops
        self.mods = mods
        R = [regs_of(o) for o in ops]
        if op == 's_nop':
            self.kind = 'salu'
            self.states = int(ops[0], 0) + 1
        elif op.startswith('v_mfma'):
            self.kind = 'mfma'
            self.defs = R[0]
            self.srcab = R[1] | R[2]
            self.srcc = R[3]
            self.uses = self.srcab | self.srcc
            self.passes = 8 if '32x32x16' in op else 4
        elif op.startswith('v_'):
            self.kind = 'valu'
            if op.startswith('v_cmp'):
                self.defs = R[0]
                self.uses = set().union(*R[1:])
            elif op.startswith('v_permlane') and 'swap' in op:
                self.defs = R[0] | R[1]
                self.uses = R[0] | R[1]
            elif op.startswith(('v_add_co', 'v_sub_co', 'v_addc_co', 'v_subb_co', 'v_subrev_co')):
                self.defs = R[0] | R[1]
                self.uses = set().union(*R[2:])
            else:
                self.defs = R[0]
                self.uses = set().union(*R[1:]) if len(R) > 1 else set()
                if op.startswith(('v_fmac', 'v_dot2c', 'v_pk_fmac', 'v_writelane')) or 'dpp' in op:
                    self.uses |= R[0]
            if 'dpp' in op or 'row_' in mods or 'quad_perm' in mods:
                self.dpp = True
        elif op.startswith(('buffer_', 'global_')):
            self.kind = 'vmem'
            if 'lds' in mods.split():
                self.lds_dma = True
                self.uses = set().union(*R) | {('s', 124)}
            elif '_load' in op:
                self.defs = R[0]
                self.uses = set().union(*R[1:])
                if 'd16' in op:
                    self.uses |= R[0]
            elif '_store' in op:
                self.uses = set().union(*R)
                if 'x3' in op or 'x4' in op:
                    self.wide_store_data = R[0] if op.startswith('buffer_') else R[1]
            elif '_atomic' in op:
                self.uses = set().union(*R)
                if 'sc0' in mods:
                    self.defs = R[0]
                if 'cmpswap_x2' in op:
                    self.wide_store_data = R[0]
        elif op.startswith('ds_'):
            self.kind = 'ds'
            if '_read' in op or 'permute' in op or 'swizzle' in op:
                self.defs = R[0]
                self.uses = set().union(*R[1:]) if len(R) > 1 else set()
            else:
                self.uses = set().union(*R)
        elif op.startswith('s_'):
            self.kind = 'salu'
            if op.startswith(('s_cbranch', 's_branch')):
                self.target = ops[0]
            elif op.startswith(('s_cmp', 's_waitcnt', 's_barrier', 's_endpgm', 's_sleep', 's_setprio', 's_bitcmp')):
                self.uses = set().union(*R) if R else set()
            elif op.startswith(('s_load', 's_memtime', 's_memrealtime', 's_buffer_load')):
                self.kind = 'smem'
                self.defs = R[0]
                self.uses = set().union(*R[1:]) if len(R) > 1 else set()
            else:
                self.defs = R[0] if R else set()
                self.uses = set().union(*R[1:]) if len(R) > 1 else set()
                if 'saveexec' in op:
                    self.defs |= {('s', 126), ('s', 127)}


def vec(regs):
    return {x for x in regs if x[0] in 'va'}


def sc(regs):
    return {x for x in regs if x[0] == 's'}


def required(p, c):
    n = 0
    if p.kind == 'valu':
        vd = vec(p.defs)
        sd = sc(p.defs)
        if c.kind == 'mfma' and vd & c.uses:
            n = max(n, 2)
        if c.kind == 'valu':
            if c.op.startswith(('v_readlane', 'v_readfirstlane')) and vd & c.uses:
                n = max(n, 1)
            if (c.dpp or c.op.startswith('v_permlane')) and vd & c.uses:
                n = max(n, 2)
            if sd & c.uses:
                n = max(n, 4 if c.op.startswith(('v_readlane', 'v_writelane')) else 2)
            if p.op.startswith(TRANS) and vd & (c.uses | c.defs):
                n = max(n, 1)
        if c.kind in ('vmem', 'ds') and p.op.startswith(TRANS) and vd & c.uses:
            n = max(n, 1)
        if c.kind == 'vmem' and sd & c.uses:
            n = max(n, 5)
    elif p.kind == 'mfma':
        big = {4: 8, 8: 12}[p.passes]
        part = {4: 6, 8: 10}[p.passes]
        war = {4: 3, 8: 7}[p.passes]
        if c.kind == 'mfma':
            if p.defs & c.srcab:
                n = max(n, big)
            if p.defs & c.srcc:
                if not (p.defs == c.srcc and p.passes == c.passes):
                    n = max(n, part)
            elif p.defs & c.defs:
                n = max(n, big)
        elif c.kind == 'valu':
            if p.defs & (c.uses | c.defs):
                n = max(n, big)
            if p.srcc & c.defs:
                n = max(n, war)
        elif c.kind in ('vmem', 'ds'):
            if p.defs & (c.uses | c.defs):
                n = max(n, big)
            if p.srcc & c.defs:
                n = max(n, war)
    elif p.kind == 'vmem':
        if p.wide_store_data and (p.wide_store_data & c.defs):
            n = max(n, 2)
    elif p.kind == 'salu':
        if ('s', 124) in p.defs and (c.lds_dma or 'addtid' in c.op):
            n = max(n, 1)
    return n


WINDOW = 14


def deficit(hist, c):
    dist = 0
    need = 0
    for p in reversed(hist):
        if p.kind == 'none':
            continue
        r = required(p, c)
        if r > dist:
            need = max(need, r - dist)
        dist += p.states
        if dist >= WINDOW:
            break
    return need


class Emit:
    def __init__(self):
        self.ins = []
        self.uid = 0
        self.vm_issued = 0
        self.lg_issued = 0
        self.vm_done = 0
        self.lg_done = 0

    def __call__(self, s):
        for l in s.split('\n'):
            l = l.strip()
            if l:
                self.ins.append(Ins(l))

    def lab(self, base='L'):
        self.uid += 1
        return '%s_%d' % (base, self.uid)

    def vm(self, s, counted=True):
        self(s)
        if counted:
            self.vm_issued += 1
            return self.vm_issued - 1
        return None

    def lg(self, s, counted=True):
        self(s)
        if counted:
            self.lg_issued += 1
            return self.lg_issued - 1
        return None

    def wait(self, vm=None, lg=None):
        parts = []
        if vm is not None and vm >= self.vm_done:
            n = self.vm_issued - vm - 1
            parts.append('vmcnt(%d)' % min(n, 63))
            self.vm_done = max(vm + 1, self.vm_issued - min(n, 63))
        if lg is not None and lg >= self.lg_done:
            n = self.lg_issued - lg - 1
            parts.append('lgkmcnt(%d)' % min(n, 15))
            self.lg_done = max(self.lg_done, self.lg_issued - min(n, 15))
        if parts:
            self('s_waitcnt ' + ' '.join(parts))

    def wait_all(self, vm=True, lg=True):
        parts = []
        if vm:
            parts.append('vmcnt(0)')
            self.vm_done = self.vm_issued
        if lg:
            parts.append('lgkmcnt(0)')
            self.lg_done = self.lg_issued
        self('s_waitcnt ' + ' '.join(parts))

    def last_vm(self):
        return self.vm_issued - 1

    def last_lg(self):
        return self.lg_issued - 1

    def finalize(self):
        out = []
        nops = 0
        for c in self.ins:
            if c.kind != 'none':
                d = deficit(out[-40:], c)
                if d > 0:
                    out.append(Ins('s_nop %d' % (d - 1)))
                    nops += d
            out.append(c)
        changed = True
        while changed:
            changed = False
            labels = {x.label: i for i, x in enumerate(out) if x.is_label}
            for i, b in enumerate(out):
                if b.target is None or b.target not in labels:
                    continue
                hist = list(out[max(0, i - 40):i + 1])
                t = labels[b.target]
                worst = 0
                dist = 0
                for c in out[t:t + 40]:
                    if c.kind == 'none':
                        continue
                    dd = 0
                    need = 0
                    for p in reversed(hist):
                        if p.kind == 'none':
                            continue
                        r = required(p, c)
                        if r > dd + dist:
                            need = max(need, r - dd - dist)
                        dd += p.states
                        if dd + dist >= WINDOW:
                            break
                    worst = max(worst, need)
                    dist += c.states
                    if dist >= WINDOW or c.op in ('s_branch', 's_endpgm'):
                        break
                if worst > 0:
                    out.insert(i, Ins('s_nop %d' % (worst - 1)))
                    changed = True
                    break
        self.out = out
        return '\n'.join(('' if x.is_label else '    ') + x.text for x in out) + '\n'


def v(n, cnt=1):
    return 'v%d' % n if cnt == 1 else 'v[%d:%d]' % (n, n + cnt - 1)


def a(n, cnt=1):
    return 'a%d' % n if cnt == 1 else 'a[%d:%d]' % (n, n + cnt - 1)


def s(n, cnt=1):
    return 's%d' % n if cnt == 1 else 's[%d:%d]' % (n, n + cnt - 1)


def f2h(x):
    import struct
    return '0x%08x' % struct.unpack('<I', struct.pack('<f', x))[0]
```

```python
import sys, math
from emit import *

NAME = 'recurrent_scan__ssm_conv_h3__mixer_s_mlp__prompt_kernel'

H1 = 0x0000000
X1 = 0x0300000
HH = 0x0600000
W3P = 0x0D00000
W3H = 0x0F00000
W4P = 0x1000000
UU = 0x1300000
YT = 0x1900000
ST = 0x1C00000
FL = 0x1D00000
PROF = 0x1E00000
CH = 32768
OOB = 0x80000000
EPS = 1e-5
SPIN = 200000

S_X, S_K, S_V, S_W1, S_W2, S_W3, S_W4, S_OUT, S_WS, S_SK, S_SH, S_DBG, S_UN = 4, 8, 12, 16, 20, 24, 28, 32, 36, 40, 44, 48, 52
sC, sJ, sW, sCH, sCV = 56, 57, 58, 59, 60
sPW, sQW = 61, 62
sMASK = 63
sN0 = 64
sMQ = 66
sT = 70
sD = 90
sHALF = 91
sC1, sC2 = 92, 94
sEX = 96
sST = 98
sCNT = 100

vL, vR, vHQ, vLIN = 1, 2, 3, 4
vT = 5
vPROF = 23
vXR = 24
vX1P = 34
vM, vRS = 44, 45
vCM = 46
vCACC = 48
vXB = 80
vACC = 160
vE = 200


class Gen:
    def __init__(self, stop=99, prof=False, opts=None):
        self.e = Emit()
        self.stop = stop
        self.prof = prof
        self.nstamp = 0
        self.o = opts or {}

    def stamp(self, name=''):
        if not self.prof:
            return
        e = self.e
        e('s_memtime s[%d:%d]' % (sST, sST + 1))
        e('s_waitcnt lgkmcnt(0)')
        e.lg_done = e.lg_issued
        e('v_writelane_b32 v%d, s%d, %d ; stamp %s' % (vPROF, sST, self.nstamp, name))
        self.names = getattr(self, 'names', []) + [name]
        self.nstamp += 1

    def srd(self, d, off, size):
        e = self.e
        e('s_load_dwordx2 s[%d:%d], s[0:1], %d' % (d, d + 1, off))
        e('s_mov_b32 s%d, 0x%x' % (d + 2, size))
        e('s_mov_b32 s%d, 0x20000' % (d + 3))

    def poll(self, vaddr, nlanes, vtmp, soff='0', second=None):
        e = self.e
        lp = e.lab('L_poll')
        dn = e.lab('L_pdone')
        e('s_mov_b32 s%d, 0' % sCNT)
        if nlanes < 64:
            m = (1 << nlanes) - 1
            e('s_mov_b32 exec_lo, 0x%x' % (m & 0xffffffff))
            e('s_mov_b32 exec_hi, 0x%x' % (m >> 32))
        e(lp + ':')
        e.vm('buffer_load_dwordx2 v[%d:%d], v%d, s[%d:%d], %s offen sc1' % (vtmp, vtmp + 1, vaddr, S_WS, S_WS + 3, soff), counted=False)
        if second is not None:
            e.vm('buffer_load_dwordx2 v[%d:%d], v%d, s[%d:%d], %s offen sc1' % (vtmp + 2, vtmp + 3, second, S_WS, S_WS + 3, soff), counted=False)
        e('s_add_u32 s%d, s%d, 1' % (sCNT, sCNT))
        e('s_cmp_gt_u32 s%d, %d' % (sCNT, SPIN))
        e.wait_all(lg=False)
        e('s_cbranch_scc1 ' + dn)
        e('v_cmp_ne_u64 vcc, s[%d:%d], v[%d:%d]' % (sN0, sN0 + 1, vtmp, vtmp + 1))
        if second is not None:
            e('s_cbranch_vccnz ' + lp)
            e('v_cmp_ne_u64 vcc, s[%d:%d], v[%d:%d]' % (sN0, sN0 + 1, vtmp + 2, vtmp + 3))
        e('s_cbranch_vccnz ' + lp)
        e(dn + ':')
        if nlanes < 64:
            e('s_mov_b64 exec, -1')

    def flag(self, soff_reg, vtmp):
        e = self.e
        e('v_mov_b32 v%d, s%d' % (vtmp, sN0))
        e('v_mov_b32 v%d, s%d' % (vtmp + 1, sN0 + 1))
        e('v_mov_b32 v%d, 0' % (vtmp + 2))
        e('s_mov_b64 exec, 1')
        e.vm('buffer_store_dwordx2 v[%d:%d], v%d, s[%d:%d], s%d offen sc1' % (vtmp, vtmp + 1, vtmp + 2, S_WS, S_WS + 3, soff_reg), counted=False)
        e('s_mov_b64 exec, -1')

    def wg_flag(self, soff_expr_fn, vtmp):
        e = self.e
        sk = e.lab('L_nofl')
        e('s_cmp_lg_u32 s%d, 0' % sW)
        e('s_cbranch_scc1 ' + sk)
        soff_expr_fn(sT)
        self.flag(sT, vtmp)
        e(sk + ':')

    def unpack(self, dst, src):
        e = self.e
        e('v_lshlrev_b32 v%d, 16, v%d' % (dst, src))
        e('v_and_b32 v%d, s%d, v%d' % (dst + 1, sMASK, src))

    def normalize(self, regs, pair, tmp):
        e = self.e
        for g in range(0, len(regs), 4):
            grp = regs[g:g + 4]
            for i, d in enumerate(grp):
                self.unpack(tmp + 2 * i, d)
            for i, d in enumerate(grp):
                e('v_pk_fma_f32 v[%d:%d], v[%d:%d], v[%d:%d], v[%d:%d] op_sel:[0,0,1] op_sel_hi:[1,0,1]' % (
                    tmp + 2 * i, tmp + 2 * i + 1, tmp + 2 * i, tmp + 2 * i + 1, pair, pair + 1, pair, pair + 1))
            for i, d in enumerate(grp):
                e('v_cvt_pk_bf16_f32 v%d, v%d, v%d' % (d, tmp + 2 * i, tmp + 2 * i + 1))

    def gelu_pk(self, z, n, tmp):
        e = self.e
        P = lambda r: 'v[%d:%d]' % (r, r + 1)
        for i in range(0, n, 2):
            e('v_pk_mul_f32 %s, %s, %s' % (P(tmp + i), P(z + i), P(z + i)))
        for i in range(0, n, 2):
            e('v_pk_fma_f32 %s, %s, s[%d:%d], v[%d:%d] op_sel_hi:[1,0,0]' % (P(tmp + i), P(tmp + i), sC2, sC2 + 1, self.vC1, self.vC1 + 1))
        for i in range(0, n, 2):
            e('v_pk_mul_f32 %s, %s, %s' % (P(tmp + i), P(tmp + i), P(z + i)))
        for i in range(n):
            e('v_exp_f32 v%d, v%d' % (tmp + i, tmp + i))
        for i in range(0, n, 2):
            e('v_pk_add_f32 %s, %s, 1.0 op_sel_hi:[1,0]' % (P(tmp + i), P(tmp + i)))
        for i in range(n):
            e('v_rcp_f32 v%d, v%d' % (tmp + i, tmp + i))
        for i in range(0, n, 2):
            e('v_pk_mul_f32 %s, %s, %s' % (P(z + i), P(z + i), P(tmp + i)))

    def gelu_ops(self, z, t):
        return ['v_mul_f32 v%d, v%d, v%d' % (t, z, z),
                'v_fma_f32 v%d, v%d, s%d, v%d' % (t, t, sC2, self.vC1),
                'v_mul_f32 v%d, v%d, v%d' % (t, t, z),
                'v_exp_f32 v%d, v%d' % (t, t),
                'v_add_f32 v%d, 1.0, v%d' % (t, t),
                'v_rcp_f32 v%d, v%d' % (t, t),
                'v_mul_f32 v%d, v%d, v%d' % (z, z, t)]

    def finish(self):
        e = self.e
        if self.prof:
            e('s_lshl_b32 s%d, s2, 2' % sT)
            e('s_add_u32 s%d, s%d, s%d' % (sT, sT, sW))
            e('s_lshl_b32 s%d, s%d, 8' % (sT, sT))
            e('s_add_u32 s%d, s%d, 0x%x' % (sT, sT, PROF))
            e('v_lshlrev_b32 v%d, 2, v%d' % (vT, vL))
            e('buffer_store_dword v%d, v%d, s[%d:%d], s%d offen' % (vPROF, vT, S_WS, S_WS + 3, sT))
        e('s_branch L_end')

    def splitk(self, ns, wreg, xreg, xtok, cinit=None, mid_barrier=None):
        parts = [[b + 4 * T for T in range(5)] for b in self.part]
        return self.splitk_gen(ns, wreg, xreg, xtok, cinit, None, mid_barrier or (lambda ph: None), parts)

    def pack20(self, src, dst):
        e = self.e
        for i in range(10):
            e('v_cvt_pk_bf16_f32 v%d, v%d, v%d' % (dst + i, src + 2 * i, src + 2 * i + 1))

    def store_tile_cm(self, src, base, vrow):
        e = self.e
        a0, a1 = vT + 4, vT + 5
        e('v_lshl_add_u32 v%d, v%d, 15, v%d' % (a0, vHQ, vrow))
        e('v_lshrrev_b32 v%d, 1, v%d' % (a1, vHQ))
        e('v_lshl_add_u32 v%d, v%d, 15, v%d' % (a1, a1, vrow))
        e('v_and_b32 v%d, 1, v%d' % (vT + 6, vHQ))
        e('v_lshl_add_u32 v%d, v%d, 3, v%d' % (a1, vT + 6, a1))
        e('s_mul_i32 s%d, s%d, %d' % (sT, sJ, 10 * CH))
        e('s_add_u32 s%d, s%d, 0x%x' % (sT, sT, base))
        e('s_add_u32 s%d, s%d, %d' % (sT + 1, sT, 4 * CH))
        e('s_add_u32 s%d, s%d, %d' % (sT + 2, sT, 8 * CH))
        e.vm('buffer_store_dwordx4 %s, v%d, s[%d:%d], s%d offen sc1' % (v(src, 4), a0, S_WS, S_WS + 3, sT))
        e.vm('buffer_store_dwordx4 %s, v%d, s[%d:%d], s%d offen sc1' % (v(src + 4, 4), a0, S_WS, S_WS + 3, sT + 1))
        return e.vm('buffer_store_dwordx2 %s, v%d, s[%d:%d], s%d offen sc1' % (v(src + 8, 2), a1, S_WS, S_WS + 3, sT + 2))

    def tr_reads(self, vtp, vts, off, dst, file='a', vt2=None, vt3=None):
        e = self.e
        R = (lambda n: 'a[%d:%d]' % (n, n + 1)) if file == 'a' else (lambda n: 'v[%d:%d]' % (n, n + 1))
        tok = None
        for T in range(5):
            for e2 in range(2):
                if T == 4:
                    ad, o = vts, 128
                elif T == 2 and vt2 is not None:
                    ad, o = vt2, 0
                elif T == 3 and vt3 is not None:
                    ad, o = vt3, 0
                else:
                    ad, o = vtp, 64 * (T >> 1) + 8 * (T & 1)
                tok = e.lg('ds_read_b64_tr_b16 %s, v%d offset:%d' % (R(dst + 4 * T + 2 * e2), ad, off + o + 2560 * e2))
        return tok

    def conv_addr(self, rho0):
        e = self.e
        vF, vG, vG0, vGl = vT + 8, vT + 9, vT + 10, vT + 11
        t0, t1 = vT + 12, vT + 13
        e('v_and_b32 v%d, 3, v%d' % (t0, vR))
        e('v_mul_u32_u24 v%d, 4160, v%d' % (vF, t0))
        e('v_lshrrev_b32 v%d, 2, v%d' % (t0, vR))
        e('v_add_u32 v%d, v%d, v%d' % (t0, t0, vHQ))
        e('v_lshl_add_u32 v%d, v%d, 4, v%d' % (vF, t0, vF))
        e('s_add_u32 s%d, s%d, %d' % (sT, sQW, 64 * rho0))
        e('v_add_u32 v%d, s%d, v%d' % (vF, sT, vF))
        e('v_and_b32 v%d, 1, v%d' % (t0, vR))
        e('v_mul_u32_u24 v%d, 4128, v%d' % (t0, t0))
        e('s_add_u32 s%d, s%d, 16640' % (sT, sQW))
        e('v_add_u32 v%d, s%d, v%d' % (t0, sT, t0))
        e('v_add_u32 v%d, 4096, v%d' % (vGl, t0))
        e('v_lshrrev_b32 v%d, 1, v%d' % (t1, vR))
        e('v_lshlrev_b32 v%d, 6, v%d' % (t1, t1))
        e('v_sub_u32 v%d, v%d, v%d' % (t0, t0, t1))
        e('v_lshl_add_u32 v%d, v%d, 4, v%d' % (t0, vHQ, t0))
        e('v_add_u32 v%d, %d, v%d' % (vG, 448 + 64 * rho0, t0))
        e('v_add_u32 v%d, 3584, v%d' % (vG0, vG))
        e('v_min_u32 v%d, v%d, v%d' % (vG0, vG0, vGl))
        return vF, vG, vG0, vGl

    def conv_half(self, first):
        e = self.e
        sk = e.lab('L_noconv')
        e('s_cmp_eq_u32 s%d, 0' % sCV)
        e('s_cbranch_scc1 ' + sk)
        vF, vG, vG0, vGl = self.conv_addr(0 if first else 4)
        F = lambda i: vXB + 4 * i
        G = lambda i: vXB + 32 + 4 * i

        def rdF(i):
            e('ds_read_b128 %s, v%d offset:%d' % (v(F(i), 4), vF, 512 * i))

        def rdG(i):
            if i == 0:
                e('ds_read_b128 %s, v%d' % (v(G(0), 4), vG0))
            else:
                e('ds_read_b128 %s, v%d offset:%d' % (v(G(i), 4), vG, 512 * (7 - i)))
        for i in range(7, -1, -1):
            rdF(i)
            rdG(i)
        if first:
            fd = vXB + 64
            t0, t1 = vT + 12, vT + 13
            e('v_lshrrev_b32 v%d, 2, v%d' % (t0, vR))
            e('v_add_u32 v%d, v%d, v%d' % (t0, t0, vHQ))
            e('v_mov_b32 v%d, s%d' % (t1, sD))
            e('v_cmp_eq_u32 vcc, 3, v%d' % t0)
            e('v_cndmask_b32 v%d, 0, v%d, vcc' % (t1, t1))
            e('v_and_b32 v%d, 3, v%d' % (t0, vR))
            for dd in range(4):
                e('v_cmp_eq_u32 vcc, %d, v%d' % (3 - dd, t0))
                e('v_cndmask_b32 v%d, 0, v%d, vcc' % (fd + dd, t1))
            e('s_waitcnt lgkmcnt(0)')
            for b in range(8):
                e('v_mfma_f32_16x16x32_bf16 %s, %s, %s, 0' % (v(vCACC + 4 * b, 4), v(fd, 4), v(G(b), 4)))
        lp = e.lab('L_conv')
        e('s_mov_b32 s%d, 0' % sCNT)
        e(lp + ':')
        e('v_add_u32 v%d, 64, v%d' % (vF, vF))
        e('v_add_u32 v%d, 64, v%d' % (vG, vG))
        order7 = [(3, 4), (4, 3), (2, 5), (5, 2), (1, 6), (6, 1), (0, 7), (7, 0)]
        for n, (aa, bb) in enumerate(order7):
            e('s_waitcnt lgkmcnt(%d)' % (7 - n))
            e('v_mfma_f32_16x16x32_bf16 %s, %s, %s, %s' % (v(vCACC + 28, 4), v(F(aa), 4), v(G(bb), 4), v(vCACC + 28, 4)))
            if n == 0:
                e('v_add_u32 v%d, 3584, v%d' % (vG0, vG))
            if n == 1:
                e('v_min_u32 v%d, v%d, v%d' % (vG0, vG0, vGl))
        rdF(7)
        rdG(7)
        for tau in range(6, -1, -1):
            for aa in range(tau + 1):
                e('v_mfma_f32_16x16x32_bf16 %s, %s, %s, %s' % (v(vCACC + 4 * tau, 4), v(F(aa), 4), v(G(tau - aa), 4), v(vCACC + 4 * tau, 4)))
            rdF(tau)
            rdG(tau)
        e('s_add_u32 s%d, s%d, 1' % (sCNT, sCNT))
        e('s_cmp_lt_u32 s%d, 4' % sCNT)
        e('s_cbranch_scc1 ' + lp)
        e('s_waitcnt lgkmcnt(0)')
        if not first:
            t0, t1 = vT + 12, vT + 13
            e('v_lshrrev_b32 v%d, 1, v%d' % (t0, vR))
            e('v_lshlrev_b32 v%d, 6, v%d' % (t0, t0))
            e('v_lshl_add_u32 v%d, v%d, 4, v%d' % (t0, vHQ, t0))
            e('v_and_b32 v%d, 1, v%d' % (t1, vR))
            e('v_lshl_add_u32 v%d, v%d, 3, v%d' % (t0, t1, t0))
            e('s_lshl_b32 s%d, s%d, 12' % (sT, sCH))
            e('s_add_u32 s%d, s%d, 0x%x' % (sT, sT, YT))
            for tau in range(8):
                b = vCACC + 4 * tau
                e('v_cvt_pk_bf16_f32 v%d, v%d, v%d' % (b, b, b + 1))
                e('v_cvt_pk_bf16_f32 v%d, v%d, v%d' % (b + 1, b + 2, b + 3))
                e.vm('buffer_store_dwordx2 %s, v%d, s[%d:%d], s%d offen offset:%d sc1' % (v(b, 2), t0, S_WS, S_WS + 3, sT, 512 * tau), counted=False)
            e('s_waitcnt vmcnt(0)')
            e('s_mul_i32 s%d, s%d, 80' % (sT, sJ))
            e('s_sub_u32 s%d, s%d, s%d' % (sT, sCH, sT))
            e('s_lshr_b32 s%d, s%d, 3' % (sT + 1, sT))
            e('s_lshl_b32 s%d, s%d, 7' % (sT + 1, sT + 1))
            e('s_and_b32 s%d, s%d, 7' % (sT, sT))
            e('s_lshl_b32 s%d, s%d, 3' % (sT, sT))
            e('s_add_u32 s%d, s%d, s%d' % (sT, sT, sT + 1))
            e('s_lshl_b32 s%d, s%d, 11' % (sT + 1, sJ))
            e('s_add_u32 s%d, s%d, s%d' % (sT, sT, sT + 1))
            e('s_add_u32 s%d, s%d, 0x%x' % (sT, sT, FL + 0x8000))
            self.flag(sT, vT + 13)
        e(sk + ':')

    def row_flag_fn(self, ph):
        def f(d):
            e = self.e
            e('s_lshl_b32 s%d, s%d, 7' % (d, sC))
            e('s_lshl_b32 s%d, s%d, 3' % (d + 1, sJ))
            e('s_add_u32 s%d, s%d, s%d' % (d, d, d + 1))
            e('s_add_u32 s%d, s%d, 0x%x' % (d, d, FL + ph * 4096))
        return f

    def poll_row8(self, ph):
        e = self.e
        e('s_lshl_b32 s%d, s%d, 7' % (sT, sC))
        e('s_add_u32 s%d, s%d, 0x%x' % (sT, sT, FL + ph * 4096))
        e('v_lshlrev_b32 v%d, 3, v%d' % (vT + 4, vL))
        self.poll(vT + 4, 8, vT + 5, soff='s%d' % sT)

    def build(self):
        e = self.e
        WS = 's[%d:%d]' % (S_WS, S_WS + 3)
        e('s_cmp_ge_u32 s2, 256')
        e('s_cbranch_scc1 L_end')
        if self.prof:
            e('s_memrealtime s[%d:%d]' % (sT, sT + 1))
        self.srd(S_X, 0, 2621440)
        self.srd(S_K, 8, 2621440)
        self.srd(S_V, 16, 2621440)
        self.srd(S_SH, 24, 5120)
        self.srd(S_SK, 32, 4096)
        self.srd(S_W1, 56, 819200)
        self.srd(S_W2, 64, 819200)
        self.srd(S_W3, 72, 2211840)
        self.srd(S_W4, 80, 2211840)
        self.srd(S_OUT, 88, 2621440)
        self.srd(S_DBG, 96, 256)
        self.srd(S_WS, 104, 268435456)
        e('s_load_dwordx2 s[%d:%d], s[0:1], 40' % (sT + 2, sT + 3))
        e('s_memrealtime s[%d:%d]' % (sN0, sN0 + 1))
        e('v_and_b32 v%d, 63, v0' % vL)
        e('v_lshrrev_b32 v%d, 6, v0' % vT)
        e('v_and_b32 v%d, 15, v%d' % (vR, vL))
        e('v_readfirstlane_b32 s%d, v%d' % (sW, vT))
        e('v_lshrrev_b32 v%d, 4, v%d' % (vHQ, vL))
        e('v_lshlrev_b32 v%d, 4, v%d' % (vLIN, vL))
        e('s_and_b32 s%d, s2, 7' % sC)
        e('s_lshl_b32 s%d, s%d, 2' % (sC, sC))
        e('s_lshr_b32 s%d, s2, 6' % sJ)
        e('s_add_u32 s%d, s%d, s%d' % (sC, sC, sJ))
        e('s_bfe_u32 s%d, s2, 0x30003' % sJ)
        e('s_mov_b32 s%d, 0xffff0000' % sMASK)
        for q in range(4):
            e('s_add_u32 s%d, s%d, %d' % (sMQ + q, sW, 1 + q))
            e('s_and_b32 s%d, s%d, 3' % (sMQ + q, sMQ + q))
        e('s_mul_i32 s%d, s%d, 15360' % (sPW, sW))
        e('s_mul_i32 s%d, s%d, 25600' % (sQW, sW))
        e('s_sub_u32 s%d, 138240, s%d' % (sQW, sQW))
        e('s_lshr_b32 s%d, s%d, 1' % (sT + 4, sC))
        e('s_mul_i32 s%d, s%d, 5' % (sT + 4, sT + 4))
        e('s_and_b32 s%d, s%d, 1' % (sT + 5, sC))
        e('s_mul_i32 s%d, s%d, 3' % (sT + 6, sT + 5))
        e('s_add_u32 s%d, s%d, s%d' % (sT + 4, sT + 4, sT + 6))
        e('s_add_u32 s%d, s%d, s%d' % (sT + 4, sT + 4, sW))
        e('s_mul_i32 s%d, s%d, 80' % (sCH, sJ))
        e('s_add_u32 s%d, s%d, s%d' % (sCH, sCH, sT + 4))
        e('s_add_u32 s%d, s%d, s%d' % (sT + 5, sT + 5, sW))
        e('s_cmp_lt_u32 s%d, 3' % (sT + 5))
        e('s_cselect_b32 s%d, 1, 0' % sCV)
        e('s_cselect_b32 s%d, s%d, 0' % (sCH, sCH))
        if self.prof:
            e('v_mov_b32 v%d, 0' % vPROF)
        e('s_waitcnt lgkmcnt(0)')
        if self.prof:
            e('v_writelane_b32 v%d, s%d, 63' % (vPROF, sT))
        self.stamp('start')
        nn = e.lab('L_nononce')
        e('s_or_b32 s%d, s2, s%d' % (sT + 4, sW))
        e('s_cmp_lg_u32 s%d, 0' % (sT + 4))
        e('s_cbranch_scc1 ' + nn)
        e('s_or_b32 s%d, s%d, 0x40000000' % (sN0 + 1, sN0 + 1))
        e('v_mov_b32 v%d, s%d' % (vT + 1, sN0))
        e('v_mov_b32 v%d, s%d' % (vT + 2, sN0 + 1))
        e('v_mov_b32 v%d, 0' % (vT + 3))
        e('s_mov_b64 exec, 1')
        e.vm('buffer_store_dwordx2 v[%d:%d], v%d, s[%d:%d], 0 offen sc1' % (vT + 1, vT + 2, vT + 3, S_DBG, S_DBG + 3), counted=False)
        e('s_mov_b64 exec, -1')
        e(nn + ':')
        e('s_lshr_b32 s%d, s%d, 1' % (sT + 4, sCH))
        e('s_lshl_b32 s%d, s%d, 2' % (sT + 4, sT + 4))
        e('s_load_dword s%d, s[%d:%d], s%d' % (sD, sT + 2, sT + 3, sT + 4))
        e('s_lshl_b32 s%d, s%d, 12' % (sT + 4, sCH))
        e('s_add_u32 s%d, s%d, s%d' % (S_SK, S_SK, sT + 4))
        e('s_addc_u32 s%d, s%d, 0' % (S_SK + 1, S_SK + 1))

        va = vT
        e('v_mul_u32_u24 v%d, 1280, v%d' % (va, vR))
        e('v_lshl_add_u32 v%d, v%d, 4, v%d' % (va, vHQ, va))
        e('s_mul_i32 s%d, s%d, %d' % (sT, sC, 64 * 1280))
        e('s_mul_i32 s%d, s%d, 320' % (sT + 1, sW))
        e('s_add_u32 s%d, s%d, s%d' % (sT + 1, sT + 1, sT))
        xtok = {}
        for q in range(4):
            e('s_mul_i32 s%d, s%d, %d' % (sT + 2, sMQ + q, 16 * 1280))
            e('s_add_u32 s%d, s%d, s%d' % (sT + 2, sT + 2, sT + 1))
            for s_ in range(5):
                xtok[q, s_] = e.vm('buffer_load_dwordx4 %s, v%d, s[%d:%d], s%d offen offset:%d' % (v(vXB + 20 * q + 4 * s_, 4), va, S_X, S_X + 3, sT + 2, 64 * s_))
        e('s_mul_i32 s%d, s%d, %d' % (sT + 1, sW, 16 * 1280))
        e('s_add_u32 s%d, s%d, s%d' % (sT + 1, sT + 1, sT))
        e('s_mul_i32 s%d, s%d, 160' % (sT + 2, sJ))
        e('s_add_u32 s%d, s%d, s%d' % (sT + 1, sT + 1, sT + 2))
        e.vm('buffer_load_dwordx4 %s, v%d, s[%d:%d], s%d offen' % (v(vXR, 4), va, S_X, S_X + 3, sT + 1))
        e.vm('buffer_load_dwordx4 %s, v%d, s[%d:%d], s%d offen offset:64' % (v(vXR + 4, 4), va, S_X, S_X + 3, sT + 1))
        e('v_mul_u32_u24 v%d, 1280, v%d' % (va + 1, vR))
        e('v_lshl_add_u32 v%d, v%d, 3, v%d' % (va + 1, vHQ, va + 1))
        xowntok = e.vm('buffer_load_dwordx2 %s, v%d, s[%d:%d], s%d offen offset:128' % (v(vXR + 8, 2), va + 1, S_X, S_X + 3, sT + 1))
        self.stamp('x issued')
        vW = vE
        vKP = vE + 5
        vU = vE + 10
        for n in range(5):
            t0, t1 = vT + 2, vT + 3
            e('v_add_u32 v%d, %d, v%d' % (t0, 64 * n, vL))
            e('v_mul_u32_u24 v%d, 6554, v%d' % (t1, t0))
            e('v_lshrrev_b32 v%d, 16, v%d' % (t1, t1))
            e('v_mul_u32_u24 v%d, 10, v%d' % (vU + n, t1))
            e('v_sub_u32 v%d, v%d, v%d' % (vU + n, t0, vU + n))
            e('v_bfe_u32 v%d, v%d, 2, 2' % (t0, t1))
            e('v_lshlrev_b32 v%d, 3, v%d' % (t0, t0))
            e('v_and_b32 v%d, 3, v%d' % (vKP + n, t1))
            e('v_add_u32 v%d, v%d, v%d' % (vKP + n, vKP + n, t0))
            e('v_lshrrev_b32 v%d, 4, v%d' % (t1, t1))
            e('v_lshl_add_u32 v%d, v%d, 2, v%d' % (vKP + n, t1, vKP + n))
            e('v_mul_u32_u24 v%d, 1280, v%d' % (vW + n, vKP + n))
            e('v_lshl_add_u32 v%d, v%d, 4, v%d' % (vW + n, vU + n, vW + n))
        sB = sT + 4
        sDst = sT + 8
        sPitch, sSrc, sIs3 = sT + 13, sT + 14, sT + 15
        l4, lP = e.lab('L_u4'), e.lab('L_up')
        e('s_cmp_ge_u32 s%d, 20' % sC)
        e('s_cbranch_scc1 ' + l4)
        e('s_cmp_eq_u32 s%d, 3' % sW)
        e('s_cbranch_scc1 ' + l4)
        e('s_mov_b32 s%d, 3456' % sPitch)
        e('s_mul_i32 s%d, s%d, %d' % (sSrc, sC, 32 * 3456))
        e('s_mul_i32 s%d, s%d, 384' % (sT, sJ))
        e('s_mul_i32 s%d, s%d, 3' % (sT + 1, sJ))
        e('s_lshr_b32 s%d, s%d, 1' % (sT + 1, sT + 1))
        e('s_lshl_b32 s%d, s%d, 5' % (sT + 1, sT + 1))
        e('s_add_u32 s%d, s%d, 3072' % (sT + 1, sT + 1))
        e('s_mul_i32 s%d, s%d, %d' % (sT + 2, sJ, 4 * 61440))
        e('s_lshl_b32 s%d, s%d, 10' % (sT + 3, sC))
        e('s_add_u32 s%d, s%d, s%d' % (sT + 2, sT + 2, sT + 3))
        e('s_add_u32 s%d, s%d, 0x%x' % (sT + 2, sT + 2, W3P))
        e('s_mul_i32 s%d, s%d, 40960' % (sIs3, sJ))
        e('s_add_u32 s%d, s%d, s%d' % (sT + 3, sT + 3, sIs3))
        e('s_add_u32 s%d, s%d, 0x%x' % (sT + 3, sT + 3, W3H))
        lB, lC = e.lab('L_uB'), e.lab('L_uC')
        e('s_cmp_eq_u32 s%d, 1' % sW)
        e('s_cbranch_scc1 ' + lB)
        e('s_cmp_eq_u32 s%d, 2' % sW)
        e('s_cbranch_scc1 ' + lC)
        for i, o in enumerate([0, 96, 128, 64]):
            e('s_add_u32 s%d, s%d, %d' % (sB + i, sT, o))
        for i, o in enumerate([0, 20480, 61440, 61440 + 20480, 40960]):
            e('s_add_u32 s%d, s%d, %d' % (sDst + i, sT + 2, o))
        e('s_mov_b32 s%d, 2' % sIs3)
        e('s_branch ' + lP)
        e(lB + ':')
        for i, o in enumerate([192, 160, 256]):
            e('s_add_u32 s%d, s%d, %d' % (sB + i, sT, o))
        e('s_mov_b32 s%d, s%d' % (sB + 3, sT + 1))
        for i, o in enumerate([2 * 61440, 2 * 61440 + 20480, 61440 + 40960, 2 * 61440 + 40960]):
            e('s_add_u32 s%d, s%d, %d' % (sDst + i, sT + 2, o))
        e('s_mov_b32 s%d, s%d' % (sDst + 4, sT + 3))
        e('s_mov_b32 s%d, 3' % sIs3)
        e('s_branch ' + lP)
        e(lC + ':')
        for i, o in enumerate([288, 352]):
            e('s_add_u32 s%d, s%d, %d' % (sB + i, sT, o))
        e('s_add_u32 s%d, s%d, 32' % (sB + 2, sT + 1))
        e('s_mov_b32 s%d, 0x%x' % (sB + 3, OOB))
        for i, o in enumerate([3 * 61440, 3 * 61440 + 20480, 3 * 61440 + 40960]):
            e('s_add_u32 s%d, s%d, %d' % (sDst + i, sT + 2, o))
        e('s_add_u32 s%d, s%d, 20480' % (sDst + 3, sT + 3))
        e('s_mov_b32 s%d, 0x%x' % (sDst + 4, OOB))
        e('s_mov_b32 s%d, 3' % sIs3)
        e('s_branch ' + lP)
        e(l4 + ':')
        e('s_sub_u32 s%d, s%d, 20' % (sT, sC))
        e('s_lshl_b32 s%d, s%d, 2' % (sT, sT))
        e('s_add_u32 s%d, s%d, s%d' % (sT, sT, sW))
        e('s_add_u32 s%d, s%d, 20' % (sT, sT))
        e('s_cmp_lt_u32 s%d, 20' % sC)
        e('s_cselect_b32 s%d, s%d, s%d' % (sT, sC, sT))
        e('s_mov_b32 s%d, 1280' % sPitch)
        e('s_mul_i32 s%d, s%d, %d' % (sSrc, sT, 32 * 1280))
        e('s_mul_i32 s%d, s%d, 160' % (sT + 1, sJ))
        for i, o in enumerate([0, 64, 96, 128]):
            e('s_add_u32 s%d, s%d, %d' % (sB + i, sT + 1, o))
        e('s_mul_i32 s%d, s%d, 286720' % (sT + 2, sJ))
        e('s_mul_i32 s%d, s%d, 5120' % (sT + 3, sT))
        e('s_add_u32 s%d, s%d, s%d' % (sT + 2, sT + 2, sT + 3))
        e('s_add_u32 s%d, s%d, 0x%x' % (sT + 2, sT + 2, W4P))
        e('s_cmp_lt_u32 s%d, 54' % sT)
        e('s_cselect_b32 s%d, s%d, 0x%x' % (sT + 2, sT + 2, OOB))
        e('s_cselect_b32 s%d, s%d, 0x%x' % (sSrc, sSrc, OOB))
        for i in range(5):
            e('s_add_u32 s%d, s%d, %d' % (sDst + i, sT + 2, 1024 * i))
        e('s_mov_b32 s%d, 0' % sIs3)
        e(lP + ':')
        e('s_cmp_lg_u32 s%d, 0' % sIs3)
        e('s_cselect_b32 s%d, s%d, s%d' % (S_UN, S_W3, S_W4))
        e('s_cselect_b32 s%d, s%d, s%d' % (S_UN + 1, S_W3 + 1, S_W4 + 1))
        e('s_mov_b32 s%d, 2211840' % (S_UN + 2))
        e('s_mov_b32 s%d, 0x20000' % (S_UN + 3))
        e('s_add_u32 s%d, s%d, %d' % (sT, sQW, 2 * 5120))
        for n in range(5):
            t0, t1, t2 = vT + 2, vT + 3, vT + 4
            u = vU + n
            e('v_and_b32 v%d, 1, v%d' % (t1, u))
            e('v_lshlrev_b32 v%d, 4, v%d' % (t1, t1))
            e('v_lshlrev_b32 v%d, 4, v%d' % (t0, u))
            e('v_add_u32 v%d, s%d, v%d' % (t0, sB, t0))
            for i, lim in ((1, 4), (2, 6), (3, 8)):
                e('v_add_u32 v%d, s%d, v%d' % (t2, sB + i, t1))
                e('v_cmp_le_u32 vcc, %d, v%d' % (lim, u))
                e('v_cndmask_b32 v%d, v%d, v%d, vcc' % (t0, t0, t2))
            e('v_mad_u32_u24 v%d, v%d, s%d, v%d' % (t0, vKP + n, sPitch, t0))
            e('s_add_u32 m0, s%d, %d' % (sT, 1024 * n))
            untok = e.vm('buffer_load_dwordx4 v%d, s[%d:%d], s%d offen lds' % (t0, S_UN, S_UN + 3, sSrc))
        self.stamp('unit issued')
        vKV = vACC
        vK = vACC
        vV = vCACC
        vSH = vACC + 24
        vQD = vT + 16
        t0, t1 = vT + 2, vT + 3
        e('v_cmp_le_u32 vcc, 20, v%d' % vL)
        e('v_cndmask_b32 v%d, 0, 1, vcc' % t0)
        e('v_mul_u32_u24 v%d, 20, v%d' % (t1, t0))
        e('v_sub_u32 v%d, v%d, v%d' % (t1, vL, t1))
        e('s_lshl_b32 s%d, s%d, 6' % (sT, sC))
        e('s_lshl_b32 s%d, s%d, 4' % (sT + 1, sW))
        e('s_add_u32 s%d, s%d, s%d' % (sT, sT, sT + 1))
        e('v_lshl_add_u32 v%d, v%d, 3, s%d' % (t0, t0, sT))
        e('s_mul_i32 s%d, s%d, 80' % (sT + 1, sJ))
        e('v_lshl_add_u32 v%d, v%d, 2, s%d' % (vT + 4, t1, sT + 1))
        e('v_sub_u32 v%d, 2040, v%d' % (vQD, t0))
        e('v_lshlrev_b32 v%d, 1, v%d' % (vQD, vQD))
        e('v_lshl_add_u32 v%d, v%d, 12, v%d' % (vQD, vT + 4, vQD))
        e('v_subrev_u32 v%d, 4, v%d' % (t0, t0))
        e('v_mul_i32_i24 v%d, 1280, v%d' % (t0, t0))
        e('v_lshl_add_u32 v%d, v%d, 1, v%d' % (t0, vT + 4, t0))
        e('v_lshlrev_b32 v%d, 3, v%d' % (vT + 4, vT + 4))
        e('s_mov_b32 exec_lo, -1')
        e('s_mov_b32 exec_hi, 0xff')
        e.vm('buffer_load_dwordx4 %s, v%d, s[%d:%d], 0 offen' % (v(vSH, 4), vT + 4, S_SH, S_SH + 3))
        e.vm('buffer_load_dwordx4 %s, v%d, s[%d:%d], 0 offen offset:16' % (v(vSH + 4, 4), vT + 4, S_SH, S_SH + 3))
        for i in range(12):
            kvtok = e.vm('buffer_load_dwordx2 %s, v%d, s[%d:%d], 0 offen' % (v(vK + 2 * i, 2), t0, S_K, S_K + 3))
            if i >= 3:
                kvtok = e.vm('buffer_load_dwordx2 %s, v%d, s[%d:%d], 0 offen' % (v(vV + 2 * (i - 3), 2), t0, S_V, S_V + 3))
            if i < 11:
                e('v_add_u32 v%d, 1280, v%d' % (t0, t0))
        e('s_mov_b64 exec, -1')
        self.stamp('kv issued')
        sWo = sT + 16
        e('s_mul_i32 s%d, s%d, %d' % (sWo, sW, 160 * 1280))
        e('s_mul_i32 s%d, s%d, 160' % (sT, sJ))
        e('s_add_u32 s%d, s%d, s%d' % (sWo, sWo, sT))

        def wdma(srd, s_, ldsbase_s, ldsoff):
            tok = None
            e('s_add_u32 s%d, s%d, %d' % (sT, sWo, s_ * 32 * 1280))
            for n in range(5):
                e('s_add_u32 m0, s%d, %d' % (ldsbase_s, ldsoff + 1024 * n))
                tok = e.vm('buffer_load_dwordx4 v%d, s[%d:%d], s%d offen lds' % (vW + n, srd, srd + 3, sT))
            return tok
        w1tok = []
        for s_ in range(5):
            w1tok.append(wdma(S_W1, s_, sPW if s_ < 3 else sQW, 5120 * (s_ if s_ < 3 else s_ - 3)))
        self.stamp('issued')
        vTP, vTS, vTPq, vTSq = vE + 15, vE + 16, vE + 17, vE + 18
        e('v_lshrrev_b32 v%d, 2, v%d' % (t0, vL))
        e('v_mul_u32_u24 v%d, 160, v%d' % (t0, t0))
        e('v_and_b32 v%d, 3, v%d' % (t1, vL))
        e('v_lshl_add_u32 v%d, v%d, 4, v%d' % (vTP, t1, t0))
        e('v_lshl_add_u32 v%d, v%d, 3, v%d' % (vTS, t1, t0))
        e('v_add_u32 v%d, s%d, v%d' % (vTPq, sQW, vTP))
        e('v_add_u32 v%d, s%d, v%d' % (vTSq, sQW, vTS))
        e('v_add_u32 v%d, s%d, v%d' % (vTP, sPW, vTP))
        e('v_add_u32 v%d, s%d, v%d' % (vTS, sPW, vTS))
        c1 = -2.0 * math.log2(math.e) * math.sqrt(2.0 / math.pi)
        self.vC1 = 46 + 1 - 1
        self.vC1 = vT + 17
        e('v_mov_b32 v%d, %s' % (self.vC1, f2h(c1)))
        e('s_mov_b32 s%d, %s' % (sC2, f2h(c1 * 0.044715)))
        e('v_lshlrev_b32 v%d, 4, v%d' % (vCM, vR))
        e('v_lshl_add_u32 v%d, v%d, 15, v%d' % (vCM, vHQ, vCM))
        e('s_lshl_b32 s%d, s%d, 10' % (sT, sC))
        e('v_add_u32 v%d, s%d, v%d' % (vCM, sT, vCM))

        vOne = vE + 20
        vSA = vE + 24
        for i in range(4):
            e('v_mov_b32 v%d, 0x3f803f80' % (vOne + i))
        for q in range(4):
            for s_ in range(5):
                e.wait(vm=xtok[q, s_])
                x = v(vXB + 20 * q + 4 * s_, 4)
                sa, ga = v(vSA + 8 * q, 4), v(vSA + 8 * q + 4, 4)
                e('v_mfma_f32_16x16x32_bf16 %s, %s, %s, %s' % (sa, v(vOne, 4), x, '0' if s_ == 0 else sa))
                e('v_mfma_f32_16x16x32_bf16 %s, %s, %s, %s' % (ga, x, x, '0' if s_ == 0 else ga))
        self.stamp('x landed')
        sM = sT
        for i, m in enumerate((0x22222222, 0x44444444, 0x88888888)):
            e('s_mov_b32 s%d, 0x%x' % (sM + 2 * i, m))
            e('s_mov_b32 s%d, 0x%x' % (sM + 2 * i + 1, m))
        e('s_add_u32 s%d, s%d, %d' % (sT + 6, sQW, 4 * 5120))
        e('v_lshl_add_u32 v%d, v%d, 3, s%d' % (vT + 2, vR, sT + 6))
        for q in range(4):
            g = vSA + 8 * q + 4
            for i in range(3):
                e('v_cndmask_b32 v%d, v%d, v%d, s[%d:%d]' % (g, g, g + 1 + i, sM + 2 * i, sM + 2 * i + 1))
            e('v_mov_b32 v%d, v%d' % (g + 1, g))
            e('v_mov_b32 v%d, v%d' % (g, g - 4))
            e('s_lshl_b32 s%d, s%d, 7' % (sT + 7, sMQ + q))
            e('v_add_u32 v%d, s%d, v%d' % (g + 2, sT + 7, vT + 2))
        e('s_mov_b32 exec_lo, 0x00f0000f')
        e('s_mov_b32 exec_hi, 0xf0000f00')
        for q in range(4):
            g = vSA + 8 * q + 4
            e.lg('ds_write_b64 v%d, %s' % (g + 2, v(g, 2)))
        e('s_mov_b64 exec, -1')
        e.wait(lg=e.last_lg())
        e('s_barrier')
        e('v_lshlrev_b32 v%d, 3, v%d' % (vT + 2, vR))
        for q in range(4):
            e('s_lshl_b32 s%d, s%d, 7' % (sT + 7, sMQ + q))
            e('s_add_u32 s%d, s%d, %d' % (sT + 7, sT + 7, 61440 + 4 * 5120))
            e('v_add_u32 v%d, s%d, v%d' % (vT + 3, sT + 7, vT + 2))
            e('v_add_u32 v%d, %d, v%d' % (vT + 4, 51200, vT + 3))
            for ww in range(4):
                e.lg('ds_read_b64 %s, v%d offset:%d' % (v(vSA + 8 * q + 2 * ww, 2), vT + 3 + (ww >> 1), 25600 * (ww & 1)))
        e.wait(lg=e.last_lg())
        P = lambda r: 'v[%d:%d]' % (r, r + 1)
        vPR = vE + 20
        e('s_mov_b32 s%d, %s' % (sT, f2h(1.0 / 640)))
        e('s_mov_b32 s%d, %s' % (sT + 1, f2h(EPS)))
        for q in range(4):
            b = vSA + 8 * q
            e('v_pk_add_f32 %s, %s, %s' % (P(b), P(b), P(b + 2)))
            e('v_pk_add_f32 %s, %s, %s' % (P(b + 4), P(b + 4), P(b + 6)))
            e('v_pk_add_f32 %s, %s, %s' % (P(b), P(b), P(b + 4)))
            e('v_mul_f32 v%d, s%d, v%d' % (b, sT, b))
            e('v_mul_f32 v%d, s%d, v%d' % (b + 1, sT, b + 1))
            e('v_fma_f32 v%d, -v%d, v%d, v%d' % (b + 1, b, b, b + 1))
            e('v_max_f32 v%d, 0, v%d' % (b + 1, b + 1))
            e('v_add_f32 v%d, s%d, v%d' % (b + 2, sT + 1, b + 1))
            e('v_rsq_f32 v%d, v%d' % (b + 2, b + 2))
            e('v_mul_f32 v%d, v%d, v%d' % (b + 3, b + 2, b + 2))
            e('v_fma_f32 v%d, v%d, v%d, s%d' % (b + 3, b + 3, b + 1, sT + 1))
            e('v_rsq_f32 v%d, v%d' % (b + 3, b + 3))
            e('v_mul_f32 v%d, v%d, v%d' % (vPR + 2 * q, b + 2, b + 3))
            e('v_mul_f32 v%d, -v%d, v%d' % (vPR + 2 * q + 1, b, vPR + 2 * q))
            if q == 3:
                e('v_mov_b32 v%d, v%d' % (vRS - 1, b + 2))
                e('v_mul_f32 v%d, -v%d, v%d' % (vRS, b, b + 2))
        for q in range(4):
            self.normalize([vXB + 20 * q + i for i in range(20)], vPR + 2 * q, vSA + 8)
        self.stamp('normalized')

        vUF = vSA
        vT2, vT3 = vT + 2, vT + 3
        e('s_cmp_eq_u32 s%d, 3' % sIs3)
        e('s_cselect_b32 s%d, -1, 0' % (sT + 2))
        e('s_cselect_b32 s%d, -1, 0' % (sT + 3))
        e('v_add_u32 v%d, 64, v%d' % (vT2, vTPq))
        e('v_add_u32 v%d, 64, v%d' % (vT + 4, vTSq))
        e('v_cndmask_b32 v%d, v%d, v%d, s[%d:%d]' % (vT2, vT2, vT + 4, sT + 2, sT + 3))
        e('v_add_u32 v%d, 72, v%d' % (vT3, vTPq))
        e('v_add_u32 v%d, 96, v%d' % (vT + 4, vTSq))
        e('v_cndmask_b32 v%d, v%d, v%d, s[%d:%d]' % (vT3, vT3, vT + 4, sT + 2, sT + 3))
        e.wait(vm=untok)
        tk = self.tr_reads(vTPq, vTSq, 2 * 5120, vUF, file='v', vt2=vT2, vt3=vT3)
        e.wait(lg=tk)
        for T in range(5):
            e.vm('buffer_store_dwordx4 %s, v%d, %s, s%d offen sc1' % (v(vUF + 4 * T, 4), vLIN, WS, sDst + T))

        self.stamp('unit done')
        e.wait(vm=kvtok)
        e('s_mov_b32 exec_lo, -1')
        e('s_mov_b32 exec_hi, 0xff')
        vSK = vE + 28 + 0
        vKF = vE + 44
        vKF = vCACC + 18
        vKF = vACC + 32
        for ch in range(4):
            for tp in range(4):
                src = vSH + 2 * ch + (tp >> 1)
                if tp & 1:
                    e('v_and_b32 v%d, s%d, v%d' % (vSK + 4 * tp + ch, sMASK, src))
                else:
                    e('v_lshlrev_b32 v%d, 16, v%d' % (vSK + 4 * tp + ch, src))
        vO = vE + 44
        c1_last = None
        for cp in range(2):
            outr = [vO + 2 * i for i in range(6)] + [vSH + 2 * i for i in range(3)]
            kf = lambda row: vKF + 2 * (row & 3)
            for row in range(12):
                self.unpack(kf(row), vK + 2 * row + cp)
                if row >= 3:
                    o = outr[row - 3]
                    tmpv = vT + 5
                    self.unpack(tmpv, vV + 2 * (row - 3) + cp)
                    e('v_pk_mul_f32 %s, %s, %s' % (P(o), P(kf(row)), P(vSK + 2 * cp)))
                    for tp in range(1, 4):
                        e('v_pk_fma_f32 %s, %s, %s, %s' % (P(o), P(kf(row - tp)), P(vSK + 4 * tp + 2 * cp), P(o)))
                    e('v_pk_mul_f32 %s, %s, %s' % (P(o), P(o), P(tmpv)))
            for cc in range(2):
                for par in (1, 0):
                    pk = vT + 7 + 0
                    pk = (vT + 7) if par else (vT + 11)
                    top = 8 if par else 7
                    for d in range(4):
                        e('v_cvt_pk_bf16_f32 v%d, v%d, v%d' % (pk + d, outr[top - 2 * d] + cc, outr[top - 2 * d - 1] + cc))
                    e('s_mov_b32 s%d, 0x%x' % (sT, UU + par * 640 * 4096 + (2 * cp + cc) * 4096))
                    c1_last = e.vm('buffer_store_dwordx4 %s, v%d, %s, s%d offen sc1' % (v(pk, 4), vQD, WS, sT))
        e('s_mov_b64 exec, -1')
        self.stamp('prep done')

        lp, dn = e.lab('L_np'), e.lab('L_nd')
        for s_ in range(5):
            e.wait(vm=w1tok[s_])
            if s_ < 3:
                tk = self.tr_reads(vTP, vTS, 5120 * s_, 20 * s_)
            else:
                tk = self.tr_reads(vTPq, vTSq, 5120 * (s_ - 3), 20 * s_)
        e.wait(lg=tk)
        self.stamp('w1 frags')
        e('v_mov_b32 v%d, 0' % (vT + 4))
        e('s_mov_b32 s%d, 0' % sCNT)
        e(lp + ':')
        e.vm('buffer_load_dwordx2 v[%d:%d], v%d, s[%d:%d], 0 offen sc1' % (vT + 5, vT + 6, vT + 4, S_DBG, S_DBG + 3), counted=False)
        e('s_add_u32 s%d, s%d, 1' % (sCNT, sCNT))
        e('s_cmp_gt_u32 s%d, %d' % (sCNT, SPIN))
        e.wait_all(lg=False)
        e('v_readfirstlane_b32 s%d, v%d' % (sN0, vT + 5))
        e('v_readfirstlane_b32 s%d, v%d' % (sN0 + 1, vT + 6))
        e('s_cbranch_scc1 ' + dn)
        e('s_cmp_eq_u32 s%d, 0' % (sN0 + 1))
        e('s_cbranch_scc1 ' + lp)
        e(dn + ':')
        self.stamp('nonce')
        w2tok = [wdma(S_W2, s_, sQW, 5120 * s_) for s_ in range(4)]

        self.stamp('w2 issued')
        self.part = [vXB, vXB + 20, vXB + 40]

        def mid1(ph):
            if ph == 1:
                def fa(d):
                    e('s_lshl_b32 s%d, s%d, 9' % (d, sJ))
                    e('s_lshr_b32 s%d, s%d, 3' % (d + 1, sC))
                    e('s_lshl_b32 s%d, s%d, 7' % (d + 1, d + 1))
                    e('s_add_u32 s%d, s%d, s%d' % (d, d, d + 1))
                    e('s_and_b32 s%d, s%d, 7' % (d + 1, sC))
                    e('s_lshl_b32 s%d, s%d, 3' % (d + 1, d + 1))
                    e('s_add_u32 s%d, s%d, s%d' % (d, d, d + 1))
                    e('s_add_u32 s%d, s%d, 0x%x' % (d, d, FL + 0x4000))
                self.wg_flag(fa, vT + 5)
                w2tok.append(wdma(S_W2, 4, sQW, 5120 * 4))
        acc = self.splitk(5, lambda s_, T: a(20 * s_ + 4 * T, 4), lambda q, s_: vXB + 20 * q + 4 * s_, lambda q, s_: None, mid_barrier=mid1)
        self.stamp('P1 mfma')
        self.gelu_pk(acc, 20, vXB + 20)
        self.pack20(acc, vXB)
        vRow = vT + 7
        e('s_lshr_b32 s%d, s%d, 1' % (sT + 4, sJ))
        e('s_lshr_b32 s%d, s%d, 1' % (sT + 5, sT + 4))
        e('s_add_u32 s%d, s%d, 1' % (sT + 5, sT + 5))
        e('s_sub_u32 s%d, 0, s%d' % (sT + 6, sT + 5))
        e('s_bitcmp1_b32 s%d, 0' % (sT + 4))
        e('s_cselect_b32 s%d, s%d, s%d' % (sT + 5, sT + 6, sT + 5))
        e('s_lshl_b32 s%d, s%d, 6' % (sT + 6, sC))
        e('s_lshl_b32 s%d, s%d, 4' % (sT + 7, sW))
        e('s_add_u32 s%d, s%d, s%d' % (sT + 6, sT + 6, sT + 7))
        e('s_add_u32 s%d, s%d, s%d' % (sT + 5, sT + 5, sT + 6))
        e('v_add_u32 v%d, s%d, v%d' % (vRow, sT + 5, vR))
        e('v_cmp_gt_u32 vcc, 2048, v%d' % vRow)
        e('v_lshlrev_b32 v%d, 4, v%d' % (vRow, vRow))
        e('v_mov_b32 v%d, 0x%x' % (vT + 8, OOB))
        e('v_cndmask_b32 v%d, v%d, v%d, vcc' % (vRow, vT + 8, vRow))
        tok = self.store_tile_cm(vXB, H1, vRow)
        e.wait(vm=tok)
        e('s_barrier')
        self.wg_flag(self.row_flag_fn(0), vT + 5)
        self.stamp('h flagged')
        if self.stop <= 1:
            return self.finish()

        for s_ in range(5):
            tk = self.tr_reads(vTPq, vTSq, 5120 * s_, 20 * s_)
        vCI = vE + 20
        for i in range(10):
            self.unpack(vCI + 2 * i, vXR + i)
        for i in range(10):
            e('v_pk_fma_f32 %s, %s, v[44:45], v[44:45] op_sel:[0,0,1] op_sel_hi:[1,0,1]' % (P(vCI + 2 * i), P(vCI + 2 * i)))
        e('v_lshrrev_b32 v%d, 3, v%d' % (vT + 4, vL))
        e('v_lshlrev_b32 v%d, 7, v%d' % (vT + 4, vT + 4))
        e('v_and_b32 v%d, 7, v%d' % (vT + 5, vL))
        e('v_lshl_add_u32 v%d, v%d, 3, v%d' % (vT + 4, vT + 5, vT + 4))
        e('s_lshl_b32 s%d, s%d, 9' % (sT, sJ))
        e('s_add_u32 s%d, s%d, 0x%x' % (sT, sT, FL + 0x4000))
        self.poll(vT + 4, 32, vT + 5, soff='s%d' % sT)
        e.wait(lg=tk)
        self.stamp('prep seen')
        sk = e.lab('L_nocd')
        e('s_cmp_eq_u32 s%d, 0' % sCV)
        e('s_cbranch_scc1 ' + sk)
        for cc in range(4):
            e('v_add_u32 v%d, %d, v%d' % (vT + 4, 4 + 4 * cc, vLIN))
            for n in range(4):
                e('s_add_u32 m0, s%d, %d' % (sQW, 4160 * cc + 64))
                e.vm('buffer_load_dwordx4 v%d, s[%d:%d], 0 offen offset:%d lds' % (vT + 4, S_SK, S_SK + 3, 1024 * n), counted=False)
        for par in range(2):
            e('s_lshl_b32 s%d, s%d, 12' % (sT, sCH))
            e('s_add_u32 s%d, s%d, 0x%x' % (sT, sT, UU + par * 640 * 4096))
            e('s_add_u32 m0, s%d, %d' % (sQW, 16640 + 4128 * par))
            for n in range(4):
                e.vm('buffer_load_dwordx4 v%d, %s, s%d offen offset:%d sc1 lds' % (vLIN, WS, sT, 1024 * n), counted=False)
        e('v_add_u32 v%d, v%d, v%d' % (vT + 4, vR, vHQ))
        e('v_lshlrev_b32 v%d, 2, v%d' % (vT + 4, vT + 4))
        e('v_subrev_u32 v%d, 60, v%d' % (vT + 4, vT + 4))
        e.vm('buffer_load_dword v%d, v%d, s[%d:%d], 0 offen' % (47, vT + 4, S_SK, S_SK + 3), counted=False)
        e(sk + ':')
        sS3 = sT + 17
        e('s_lshl_b32 s%d, s%d, 2' % (sT, sJ))
        e('s_add_u32 s%d, s%d, s%d' % (sT, sT, sW))
        e('s_mul_i32 s%d, s%d, 61440' % (sS3, sT))
        e('s_add_u32 s%d, s%d, 0x%x' % (sS3, sS3, W3P))
        e('s_mul_i32 s%d, s%d, 3' % (sT, sJ))
        e('s_add_u32 s%d, s%d, s%d' % (sT + 1, sT, sW))
        e('s_and_b32 s%d, s%d, 1' % (sHALF, sT + 1))
        e('s_lshr_b32 s%d, s%d, 1' % (sT + 1, sT + 1))
        e('s_lshr_b32 s%d, s%d, 1' % (sT, sT))
        e('s_sub_u32 s%d, s%d, s%d' % (sT, sT + 1, sT))
        e('s_lshl_b32 s%d, s%d, 1' % (sT + 2, sJ))
        e('s_add_u32 s%d, s%d, s%d' % (sT, sT, sT + 2))
        e('s_mul_i32 s%d, s%d, 20480' % (sS3 + 1, sT))
        e('s_add_u32 s%d, s%d, 0x%x' % (sS3 + 1, sS3 + 1, W3H))
        e('s_add_u32 s%d, s%d, 96' % (sS3 + 2, sT + 1))
        e('s_cmp_eq_u32 s%d, 3' % sW)
        e('s_cselect_b32 s%d, 0x%x, s%d' % (sS3 + 1, OOB, sS3 + 1))
        e('s_cselect_b32 s%d, 0, s%d' % (sHALF, sHALF))

        def slot(i):
            if i < 39:
                return a(100 + 4 * i, 4)
            if i < 64:
                return a(4 * (i - 39), 4)
            return v(vE + 24 + 4 * (i - 64), 4)

        def w3slot(f):
            return slot(f if f < 72 else f - 72)

        def w4slot(g):
            return slot(g + 8 if g < 64 else g - 64)
        w3tok = {}

        def ld_w3(f):
            ps, r_ = divmod(f, 40)
            s_, T = divmod(r_, 2)
            if ps == 0:
                base, off = sS3, T * 20480 + s_ * 1024
            elif T == 0:
                base, off = sS3, 40960 + s_ * 1024
            else:
                base, off = sS3 + 1, s_ * 1024
            e('s_add_u32 s%d, s%d, %d' % (sT + 16, base, off & ~0xfff))
            w3tok[f] = e.vm('buffer_load_dwordx4 %s, v%d, %s, s%d offen offset:%d sc1' % (w3slot(f), vLIN, WS, sT + 16, off & 0xfff))
        n_pre1 = self.o.get('w3pre1', 24)
        for f in range(n_pre1):
            ld_w3(f)
        e('s_bitcmp1_b32 s%d, 0' % sW)
        e('s_cselect_b32 s%d, 1, -1' % sT)
        e('s_add_u32 s%d, s%d, s%d' % (sT, sT, sC))
        e('s_cmp_lt_u32 s%d, 32' % sT)
        e('s_cselect_b32 s%d, s%d, s%d' % (sT, sT, sC))
        e('s_sub_u32 s%d, s%d, s%d' % (sT, sT, sC))
        e('s_lshl_b32 s%d, s%d, 7' % (sT, sT))
        e('v_lshrrev_b32 v%d, 1, v%d' % (vT + 4, vL))
        e('v_mul_lo_u32 v%d, s%d, v%d' % (vT + 4, sT, vT + 4))
        e('v_and_b32 v%d, 1, v%d' % (vT + 5, vL))
        e('v_lshl_add_u32 v%d, v%d, 3, v%d' % (vT + 4, vT + 5, vT + 4))
        e('s_lshl_b32 s%d, s%d, 7' % (sT, sC))
        e('s_lshl_b32 s%d, s%d, 4' % (sT + 1, sW))
        e('s_add_u32 s%d, s%d, s%d' % (sT, sT, sT + 1))
        e('s_add_u32 s%d, s%d, 0x%x' % (sT, sT, FL))
        e('v_add_u32 v%d, s%d, v%d' % (vT + 4, sT, vT + 4))
        vXA = vE
        e('s_lshr_b32 s%d, s%d, 1' % (sT + 5, sW))
        e('s_add_u32 s%d, s%d, 1' % (sT + 5, sT + 5))
        e('s_sub_u32 s%d, 0, s%d' % (sT + 6, sT + 5))
        e('s_bitcmp1_b32 s%d, 0' % sW)
        e('s_cselect_b32 s%d, s%d, s%d' % (sT + 5, sT + 5, sT + 6))
        e('s_lshl_b32 s%d, s%d, 6' % (sT + 6, sC))
        e('s_add_u32 s%d, s%d, s%d' % (sT + 5, sT + 5, sT + 6))
        e('v_mov_b32 v%d, 0x%x' % (vT + 8, OOB))
        for q in range(4):
            e('s_lshl_b32 s%d, s%d, 4' % (sT + 6, sMQ + q))
            e('s_add_u32 s%d, s%d, s%d' % (sT + 6, sT + 6, sT + 5))
            e('v_add_u32 v%d, s%d, v%d' % (vT + 7, sT + 6, vR))
            e('s_lshl_b32 s%d, s%d, 8' % (sT + 6, sMQ + q))
            e('v_cmp_gt_u32 vcc, 2048, v%d' % (vT + 7))
            e('v_add_u32 v%d, s%d, v%d' % (vT + 7, sT + 6, vCM))
            e('v_cndmask_b32 v%d, v%d, v%d, vcc' % (vXA + q, vT + 8, vT + 7))
        self.poll(vT + 4, 4, vT + 5)
        self.stamp('h seen')
        e('s_mul_i32 s%d, s%d, %d' % (sT, sW, 20 * CH))
        for s_ in range(5):
            e('s_add_u32 s%d, s%d, 0x%x' % (sT + 1 + s_, sT, H1 + s_ * 4 * CH))
        xtok = {}
        for q in range(4):
            for s_ in range(5):
                xtok[q, s_] = e.vm('buffer_load_dwordx4 %s, v%d, %s, s%d offen sc1' % (v(vXB + 20 * q + 4 * s_, 4), vXA + q, WS, sT + 1 + s_))
        sk = e.lab('L_nocp')
        e('s_cmp_eq_u32 s%d, 0' % sCV)
        e('s_cbranch_scc1 ' + sk)
        e('v_mul_u32_u24 v%d, 4160, v%d' % (vT + 4, vHQ))
        e('v_lshl_add_u32 v%d, v%d, 2, v%d' % (vT + 4, vR, vT + 4))
        e('v_add_u32 v%d, s%d, v%d' % (vT + 4, sQW, vT + 4))
        e.lg('ds_write_b32 v%d, v47' % (vT + 4), counted=False)
        e('v_and_b32 v%d, 3, v%d' % (vT + 4, vL))
        e('v_lshlrev_b32 v%d, 2, v%d' % (vT + 4, vT + 4))
        e('v_bfe_u32 v%d, v%d, 2, 1' % (vT + 5, vL))
        e('v_mul_u32_u24 v%d, 4128, v%d' % (vT + 5, vT + 5))
        e('s_add_u32 s%d, s%d, %d' % (sT + 6, sQW, 16640 + 4096))
        e('v_add3_u32 v%d, v%d, v%d, s%d' % (vT + 4, vT + 4, vT + 5, sT + 6))
        e('v_mov_b32 v%d, 0' % (vT + 5))
        e('s_mov_b64 exec, 0xff')
        e.lg('ds_write_b32 v%d, v%d' % (vT + 4, vT + 5), counted=False)
        e('s_mov_b64 exec, -1')
        e('s_bitcmp1_b32 s%d, 0' % sCH)
        e('s_cselect_b32 s%d, 16, 0' % (sT + 6))
        e('s_lshr_b32 s%d, s%d, s%d' % (sD, sD, sT + 6))
        e('s_and_b32 s%d, s%d, 0xffff' % (sD, sD))
        e(sk + ':')

        self.part = [vXB, vXB + 20, vXB + 40]
        acc = self.splitk(5, lambda s_, T: a(20 * s_ + 4 * T, 4), lambda q, s_: vXB + 20 * q + 4 * s_, lambda q, s_: xtok[q, s_], cinit=vCI)
        self.stamp('P2 mfma')
        self.pack20(acc, vX1P)
        e('s_lshl_b32 s%d, s%d, 6' % (sT + 6, sC))
        e('s_lshl_b32 s%d, s%d, 4' % (sT + 7, sW))
        e('s_add_u32 s%d, s%d, s%d' % (sT + 6, sT + 6, sT + 7))
        e('v_add_lshl_u32 v%d, s%d, v%d, 4' % (vRow, sT + 6, vR))
        self.store_tile_cm(vX1P, X1, vRow)
        tq = vXB
        for i in range(0, 20, 2):
            e('v_pk_mul_f32 %s, %s, %s' % (P(tq + i), P(acc + i), P(acc + i)))
        for base in (acc, tq):
            n = 20
            regs = [base + i for i in range(0, 20, 2)]
            while len(regs) > 1:
                nxt = []
                for i in range(0, len(regs) - 1, 2):
                    e('v_pk_add_f32 %s, %s, %s' % (P(regs[i]), P(regs[i]), P(regs[i + 1])))
                    nxt.append(regs[i])
                if len(regs) & 1:
                    nxt.append(regs[-1])
                regs = nxt
            e('v_add_f32 v%d, v%d, v%d' % (base, base, base + 1))
        e('v_permlane32_swap_b32 v%d, v%d' % (acc, tq))
        e('v_add_f32 v%d, v%d, v%d' % (acc, acc, tq))
        e('v_mov_b32 v%d, v%d' % (tq, acc))
        e('v_permlane16_swap_b32 v%d, v%d' % (acc, tq))
        e('v_add_f32 v%d, v%d, v%d' % (acc, acc, tq))
        e('v_lshrrev_b32 v%d, 1, v%d' % (vT + 4, vHQ))
        e('v_lshlrev_b32 v%d, 2, v%d' % (vT + 4, vT + 4))
        e('v_lshl_add_u32 v%d, v%d, 3, v%d' % (vT + 4, vR, vT + 4))
        e('s_lshl_b32 s%d, s%d, 12' % (sT, sC))
        e('s_lshl_b32 s%d, s%d, 9' % (sT + 1, sJ))
        e('s_add_u32 s%d, s%d, s%d' % (sT, sT, sT + 1))
        e('s_lshl_b32 s%d, s%d, 7' % (sT + 1, sW))
        e('s_add_u32 s%d, s%d, s%d' % (sT, sT, sT + 1))
        e('s_add_u32 s%d, s%d, 0x%x' % (sT, sT, ST))
        e('s_mov_b32 exec_lo, 0xffff')
        e('s_mov_b32 exec_hi, 0xffff')
        tok = e.vm('buffer_store_dword v%d, v%d, %s, s%d offen sc1' % (acc, vT + 4, WS, sT))
        e('s_mov_b64 exec, -1')
        n_pre2 = self.o.get('w3pre2', 72)
        for f in range(n_pre1, n_pre2):
            ld_w3(f)
        e.wait(vm=tok)
        e('s_barrier')
        self.wg_flag(self.row_flag_fn(1), vT + 5)
        self.stamp('x1 flagged')
        if self.stop <= 2:
            return self.finish()

        e('s_waitcnt lgkmcnt(0)')
        self.conv_half(True)
        self.stamp('conv a')
        self.poll_row8(1)
        self.stamp('x1 seen')
        vS8 = vACC
        e('v_lshlrev_b32 v%d, 3, v%d' % (vT + 4, vL))
        e('s_lshl_b32 s%d, s%d, 12' % (sT, sC))
        e('s_add_u32 s%d, s%d, 0x%x' % (sT, sT, ST))
        for jj in range(8):
            sttok = e.vm('buffer_load_dwordx2 %s, v%d, %s, s%d offen offset:%d sc1' % (v(vS8 + 2 * jj, 2), vT + 4, WS, sT, 512 * jj))
        e('s_mul_i32 s%d, s%d, %d' % (sT, sW, 20 * CH))
        xtok = {}
        for s_ in range(5):
            e('s_add_u32 s%d, s%d, 0x%x' % (sT + 1, sT, X1 + s_ * 4 * CH))
            for mt in range(4):
                xtok[s_, mt] = e.vm('buffer_load_dwordx4 %s, v%d, %s, s%d offen offset:%d sc1' % (v(vXB + 16 * s_ + 4 * mt, 4), vCM, WS, sT + 1, 256 * mt))
        e.wait(vm=sttok)
        for i in range(0, 8, 2):
            e('v_pk_add_f32 %s, %s, %s' % (P(vS8 + i), P(vS8 + i), P(vS8 + 8 + i)))
        e('v_pk_add_f32 %s, %s, %s' % (P(vS8), P(vS8), P(vS8 + 2)))
        e('v_pk_add_f32 %s, %s, %s' % (P(vS8 + 4), P(vS8 + 4), P(vS8 + 6)))
        e('v_pk_add_f32 %s, %s, %s' % (P(vS8), P(vS8), P(vS8 + 4)))
        b = vS8
        e('s_mov_b32 s%d, %s' % (sT + 2, f2h(1.0 / 640)))
        e('s_mov_b32 s%d, %s' % (sT + 3, f2h(EPS)))
        e('v_mul_f32 v%d, s%d, v%d' % (b, sT + 2, b))
        e('v_mul_f32 v%d, s%d, v%d' % (b + 1, sT + 2, b + 1))
        e('v_fma_f32 v%d, -v%d, v%d, v%d' % (b + 1, b, b, b + 1))
        e('v_max_f32 v%d, 0, v%d' % (b + 1, b + 1))
        e('v_add_f32 v%d, s%d, v%d' % (b + 1, sT + 3, b + 1))
        e('v_rsq_f32 v%d, v%d' % (b + 1, b + 1))
        e('v_mul_f32 v%d, -v%d, v%d' % (b, b, b + 1))
        vPR = vS8 + 8
        for src, k in ((b + 1, 0), (b, 1)):
            d = [vPR + 2 * mt + k for mt in range(4)]
            e('v_mov_b32 v%d, v%d' % (d[0], src))
            e('v_mov_b32 v%d, v%d' % (d[1], src))
            e('v_permlane16_swap_b32 v%d, v%d' % (d[0], d[1]))
            e('v_mov_b32 v%d, v%d' % (d[2], d[0]))
            e('v_mov_b32 v%d, v%d' % (d[3], d[1]))
            e('v_permlane32_swap_b32 v%d, v%d' % (d[0], d[2]))
            e('v_permlane32_swap_b32 v%d, v%d' % (d[1], d[3]))
        e('s_mul_i32 s%d, s%d, 20480' % (sT + 2, sW))
        e('v_add_u32 v%d, s%d, v%d' % (vT + 4, sT + 2, vLIN))
        for s_ in range(5):
            for mt in range(4):
                e.wait(vm=xtok[s_, mt])
                r0 = vXB + 16 * s_ + 4 * mt
                self.normalize([r0 + i for i in range(4)], vPR + 2 * mt, vACC + 16)
                e.lg('ds_write_b128 v%d, %s offset:%d' % (vT + 4, v(r0, 4), (4 * s_ + mt) * 1024))
        e.wait(lg=e.last_lg())
        e('s_barrier')
        self.stamp('X staged')

        vXa, vXb = vT + 4, vT + 5
        e('s_lshl_b32 s%d, s%d, 11' % (sT, sHALF))
        e('v_add_u32 v%d, s%d, v%d' % (vXa, sT, vLIN))
        e('s_sub_u32 s%d, 2048, s%d' % (sT, sT))
        e('v_add_u32 v%d, s%d, v%d' % (vXb, sT, vLIN))
        e('v_add_u32 v%d, 0x10000, v%d' % (vT + 6, vXa))
        e('v_add_u32 v%d, 0x10000, v%d' % (vT + 7, vXb))
        vA1 = vXB
        vA2 = vXB + 32
        vXF = vACC
        vG = vXB + 56
        vHA = vT + 8
        e('s_lshl_b32 s%d, s%d, 2' % (sT, sJ))
        e('s_add_u32 s%d, s%d, s%d' % (sT, sT, sW))
        e('s_mul_i32 s%d, s%d, %d' % (sT, sT, 6 * CH))
        sHS = sT + 10
        for sl in range(4):
            e('s_lshl_b32 s%d, s%d, 1' % (sT + 1, sHALF))
            e('s_xor_b32 s%d, s%d, %d' % (sT + 1, sT + 1, sl))
            e('s_lshl_b32 s%d, s%d, 8' % (sT + 1, sT + 1))
            e('s_add_u32 s%d, s%d, s%d' % (sHS + sl, sT + 1, sT))
            e('s_add_u32 s%d, s%d, 0x%x' % (sHS + sl, sHS + sl, HH))
        e('s_mul_i32 s%d, s%d, %d' % (sHS + 4, sS3 + 2, 2 * CH))
        e('s_sub_u32 s%d, s%d, s%d' % (sHS + 4, sHS + 4, sT))
        e('s_cmp_eq_u32 s%d, 3' % sW)
        e('s_cselect_b32 s%d, 0x%x, s%d' % (sHS + 4, OOB, sHS + 4))
        e('v_lshrrev_b32 v%d, 1, v%d' % (vHA + 1, vHQ))
        e('v_sub_u32 v%d, v%d, v%d' % (vHA + 1, vHA + 1, vHQ))
        e('v_lshlrev_b32 v%d, 15, v%d' % (vHA + 1, vHA + 1))
        e('v_add_u32 v%d, v%d, v%d' % (vHA + 1, vHA + 1, vCM))
        e('v_and_b32 v%d, 1, v%d' % (vHA, vHQ))
        e('v_lshl_add_u32 v%d, v%d, 3, v%d' % (vHA + 1, vHA, vHA + 1))
        sS4 = sT + 15
        e('s_mul_i32 s%d, s%d, 14' % (sT + 1, sW))
        e('s_cmp_eq_u32 s%d, 3' % sW)
        e('s_cselect_b32 s%d, 41, s%d' % (sT + 1, sT + 1))
        e('s_mov_b32 s%d, s%d' % (sT + 9, sT + 1))
        e('s_mul_i32 s%d, s%d, 5120' % (sS4, sT + 1))
        e('s_mul_i32 s%d, s%d, 286720' % (sT + 1, sJ))
        e('s_add_u32 s%d, s%d, s%d' % (sS4, sS4, sT + 1))
        e('s_add_u32 s%d, s%d, 0x%x' % (sS4, sS4, W4P))
        e('s_cmp_ge_u32 s%d, 2' % sW)
        e('s_cselect_b32 s%d, 0x%x, s%d' % (sT + 8, OOB, sS4))
        w4tok = {}

        def ld_w4(g):
            off = 1024 * g
            base = sS4 if g < 65 else sT + 8
            e('s_add_u32 s%d, s%d, %d' % (sT + 16, base, off & ~0xfff))
            w4tok[g] = e.vm('buffer_load_dwordx4 %s, v%d, %s, s%d offen offset:%d sc1' % (w4slot(g), vLIN, WS, sT + 16, off & 0xfff))

        def rdX(s_, sl):
            base = (vXa if sl < 2 else vXb)
            off = 4096 * s_ + 1024 * (sl & 1)
            if off >= 65536:
                base += 2
                off -= 65536
            return e.lg('ds_read_b128 %s, v%d offset:%d' % (v(vXF + 16 * (s_ & 1) + 4 * sl, 4), base, off))
        nxt3 = n_pre2
        nxt4 = 0
        hold4 = self.o.get('hold4', 52)
        xt = {}
        for sl in range(4):
            xt[0, sl] = rdX(0, sl)
        for s_ in range(20):
            for sl in range(4):
                if sl == 0:
                    e.wait(vm=w3tok[2 * s_ + 1])
                e.wait(lg=xt[s_, sl])
                for T in range(2):
                    ac = v(vA1 + 8 * sl + 4 * T, 4)
                    e('v_mfma_f32_16x16x32_bf16 %s, %s, %s, %s' % (ac, w3slot(2 * s_ + T), v(vXF + 16 * (s_ & 1) + 4 * sl, 4), '0' if s_ == 0 else ac))
                    if T == 0:
                        xt[s_ + 1, sl] = rdX((s_ + 1) % 20 + (20 if False else 0), sl) if s_ < 19 else self._rd_wrap(rdX, sl)
            for f in (2 * s_, 2 * s_ + 1):
                if nxt3 < 80 and nxt3 - 72 <= f:
                    ld_w3(nxt3)
                    nxt3 += 1
                elif nxt4 < hold4 and nxt4 + 8 <= f:
                    ld_w4(nxt4)
                    nxt4 += 1
        self.stamp('P3 pass1')
        work = []
        for sl in range(4):
            els = [vA1 + 8 * sl + i for i in range(8)]
            seqs = [self.gelu_ops(z, vG + i) for i, z in enumerate(els)]
            for k in range(7):
                for sq in seqs:
                    work.append(sq[k])
            for i in range(4):
                work.append('v_cvt_pk_bf16_f32 v%d, v%d, v%d' % (vG + 8 + 4 * (sl & 1) + i, els[2 * i], els[2 * i + 1]))
            work.append(('st', 'buffer_store_dwordx4 %s, v%d, %s, s%d offen sc1' % (v(vG + 8 + 4 * (sl & 1), 4), vCM, WS, sHS + sl)))

        def do_work(n):
            for _ in range(n):
                if not work:
                    return
                it = work.pop(0)
                if isinstance(it, tuple):
                    e.vm(it[1])
                else:
                    e(it)
        xt2 = {(0, sl): xt[20, sl] for sl in range(4)}
        for s_ in range(20):
            f0 = 40 + 2 * s_
            for sl in range(4):
                if sl == 0:
                    e.wait(vm=w3tok[f0 + 1])
                e.wait(lg=xt2[s_, sl])
                xf = v(vXF + 16 * (s_ & 1) + 4 * sl, 4)
                ac = v(vA2 + 4 * sl, 4)
                e('v_mfma_f32_16x16x32_bf16 %s, %s, %s, %s' % (ac, w3slot(f0), xf, '0' if s_ == 0 else ac))
                if s_ < 19:
                    xt2[s_ + 1, sl] = rdX(s_ + 1, sl)
                if s_ > 0:
                    do_work(1 if sl < 2 else 2)
                if sl < 2:
                    ac = v(vA2 + 16 + 4 * sl, 4)
                    e('v_mfma_f32_16x16x32_bf16 %s, %s, %s, %s' % (ac, w3slot(f0 + 1), xf, '0' if s_ == 0 else ac))
                    if s_ > 0:
                        do_work(3)
            for f in (f0, f0 + 1):
                if nxt4 < hold4 and nxt4 + 8 <= f:
                    ld_w4(nxt4)
                    nxt4 += 1
        do_work(1000)
        self.stamp('P3 pass2')
        self.gelu_pk(vA2, 24, vA1)
        for i in range(12):
            e('v_cvt_pk_bf16_f32 v%d, v%d, v%d' % (vA1 + i, vA2 + 2 * i, vA2 + 2 * i + 1))
        for sl in range(4):
            e('s_add_u32 s%d, s%d, %d' % (sT + 1, sHS + sl, 4 * CH))
            tok = e.vm('buffer_store_dwordx2 %s, v%d, %s, s%d offen sc1' % (v(vA1 + 2 * sl, 2), vHA + 1, WS, sT + 1))
        for sl in range(2):
            e('s_add_u32 s%d, s%d, s%d' % (sT + 1, sHS + sl, sHS + 4))
            tok = e.vm('buffer_store_dwordx2 %s, v%d, %s, s%d offen sc1' % (v(vA1 + 8 + 2 * sl, 2), vHA + 1, WS, sT + 1))
        while nxt4 < 70:
            ld_w4(nxt4)
            nxt4 += 1
        e.wait(vm=tok)
        e('s_barrier')
        self.wg_flag(self.row_flag_fn(2), vT + 5)
        self.stamp('H flagged')
        if self.stop <= 3:
            return self.finish()

        self.conv_half(False)
        self.stamp('conv b')
        vCI = vE
        for i in range(10):
            self.unpack(vCI + 2 * i, vX1P + i)
        self.poll_row8(2)
        self.stamp('H seen')
        NR = 20
        order = [(q, s_) for q in range(4) for s_ in range(14)]
        xtok = {}
        sXq = sT + 10
        e('s_mul_i32 s%d, s%d, %d' % (sT, sT + 9, 4 * CH))
        e('s_add_u32 s%d, s%d, 0x%x' % (sT, sT, HH))
        for q in range(4):
            e('s_lshl_b32 s%d, s%d, 8' % (sT + 1, sMQ + q))
            e('s_add_u32 s%d, s%d, s%d' % (sXq + q, sT + 1, sT))
        e('s_cmp_ge_u32 s%d, 2' % sW)
        e('s_cselect_b32 s%d, 0x%x, 0' % (sT + 14, OOB))
        e('s_add_u32 s%d, s%d, %d' % (sT + 14, sT + 14, 13 * 4 * CH))

        def ldX(i):
            q, s_ = order[i]
            if s_ < 13:
                e('s_add_u32 s%d, s%d, %d' % (sT + 16, sXq + q, s_ * 4 * CH))
            else:
                e('s_add_u32 s%d, s%d, s%d' % (sT + 16, sXq + q, sT + 14))
            xtok[q, s_] = e.vm('buffer_load_dwordx4 %s, v%d, %s, s%d offen sc1' % (v(vXB + 4 * (i % NR), 4), vCM, WS, sT + 16))
        for i in range(NR):
            ldX(i)
        st = {'n': NR}

        def xfree(q, s_):
            if st['n'] < 56:
                ldX(st['n'])
                st['n'] += 1
        self.part = [vCACC, vXB + 64, vCACC + 20]
        self.part = [vCACC, vACC, vXB + 64 - 4 * 0]
        vY = vE + 0
        ytok = []

        def mid4(ph):
            if ph == 0:
                sk = e.lab('L_noy')
                e('s_cmp_lg_u32 s%d, 0' % sW)
                e('s_cbranch_scc1 ' + sk)
                e('v_lshrrev_b32 v%d, 3, v%d' % (vT + 4, vL))
                e('v_lshlrev_b32 v%d, 7, v%d' % (vT + 4, vT + 4))
                e('v_and_b32 v%d, 7, v%d' % (vT + 5, vL))
                e('v_lshl_add_u32 v%d, v%d, 3, v%d' % (vT + 4, vT + 5, vT + 4))
                e('v_and_b32 v%d, 0xff, v%d' % (vT + 5, vT + 4))
                e('v_add_u32 v%d, 1024, v%d' % (vT + 5, vT + 5))
                e('s_lshl_b32 s%d, s%d, 11' % (sT, sJ))
                e('s_add_u32 s%d, s%d, 0x%x' % (sT, sT, FL + 0x8000))
                sv = (e.vm_done,)
                self.poll(vT + 4, 64, vT + 7, soff='s%d' % sT, second=vT + 5)
                e.vm_done = sv[0]
                e(sk + ':')
            else:
                t = vT + 4
                e('s_lshl_b32 s%d, s%d, 6' % (sT, sC))
                e('s_lshl_b32 s%d, s%d, 4' % (sT + 1, sW))
                e('s_add_u32 s%d, s%d, s%d' % (sT, sT, sT + 1))
                e('v_and_b32 v%d, 8, v%d' % (t, vR))
                e('v_and_b32 v%d, 1, v%d' % (t + 1, vR))
                e('v_lshl_add_u32 v%d, v%d, 2, v%d' % (t, t + 1, t))
                e('v_bfe_u32 v%d, v%d, 1, 2' % (t + 1, vR))
                e('v_add3_u32 v%d, v%d, v%d, s%d' % (t, t, t + 1, sT))
                e('v_lshlrev_b32 v%d, 1, v%d' % (t, t))
                e('v_lshl_add_u32 v%d, v%d, 14, v%d' % (t + 1, vHQ, t))
                e('v_lshl_add_u32 v%d, v%d, 15, v%d' % (t, vHQ, t))
                e('s_mul_i32 s%d, s%d, %d' % (sT, sJ, 80 * 4096))
                e('s_add_u32 s%d, s%d, 0x%x' % (sT, sT, YT))
                for T in range(5):
                    for r_ in range(4):
                        col = (32 * (T >> 1) + 4 * (T & 1) + r_) if T < 4 else 64 + r_
                        e('s_add_u32 s%d, s%d, %d' % (sT + 1, sT, col * 4096))
                        ytok.append(e.vm('buffer_load_short_d16_hi v%d, v%d, %s, s%d offen sc1' % (self.vYr[4 * T + r_], t if T < 4 else t + 1, WS, sT + 1)))
        self.vYr = [vCACC + 20 + i for i in range(12)] + [vX1P + i for i in range(8)]
        for r_ in self.vYr:
            e('v_mov_b32 v%d, 0' % r_)
        e.wait(vm=w4tok[69])
        self.part = [vCACC, vACC, None]
        acc = self.splitk4(w4slot, xtok, NR, vCI, xfree, mid4)
        self.stamp('P4 mfma')
        tg = vXB
        e('s_mov_b32 s%d, %s' % (sT + 2, f2h(-math.log2(math.e))))
        for i in range(0, 20, 2):
            e('v_pk_mul_f32 %s, %s, s[%d:%d] op_sel_hi:[1,0]' % (P(tg + i), P(acc + i), sT + 2, sT + 3))
        for i in range(20):
            e('v_exp_f32 v%d, v%d' % (tg + i, tg + i))
        for i in range(0, 20, 2):
            e('v_pk_add_f32 %s, %s, 1.0 op_sel_hi:[1,0]' % (P(tg + i), P(tg + i)))
        for i in range(20):
            e('v_rcp_f32 v%d, v%d' % (tg + i, tg + i))
        for i in range(0, 20, 2):
            e('v_pk_mul_f32 %s, %s, %s' % (P(acc + i), P(acc + i), P(tg + i)))
        xu = vXB + 20
        xn = vXB + 40
        for i in range(10):
            self.unpack(xu + 2 * i, vXR + i)
        for i in range(10):
            e('v_pk_fma_f32 %s, %s, v[44:45], v[44:45] op_sel:[0,0,1] op_sel_hi:[1,0,1]' % (P(xn + 2 * i), P(xu + 2 * i)))
        e.wait(vm=ytok[-1])
        for i in range(0, 20, 2):
            e('v_pk_mul_f32 %s, %s, %s' % (P(xn + i), P(xn + i), P(self.vYr[i])))
        for i in range(0, 20, 2):
            e('v_pk_fma_f32 %s, %s, %s, %s' % (P(acc + i), P(acc + i), P(xn + i), P(xu + i)))
        self.pack20(acc, tg)
        va = vT + 4
        e('v_mul_u32_u24 v%d, 1280, v%d' % (va, vR))
        e('v_lshl_add_u32 v%d, v%d, 3, v%d' % (va + 1, vHQ, va))
        e('v_lshl_add_u32 v%d, v%d, 4, v%d' % (va, vHQ, va))
        e('s_lshl_b32 s%d, s%d, 6' % (sT, sC))
        e('s_lshl_b32 s%d, s%d, 4' % (sT + 1, sW))
        e('s_add_u32 s%d, s%d, s%d' % (sT, sT, sT + 1))
        e('s_mul_i32 s%d, s%d, 1280' % (sT, sT))
        e('s_mul_i32 s%d, s%d, 160' % (sT + 1, sJ))
        e('s_add_u32 s%d, s%d, s%d' % (sT, sT, sT + 1))
        O = 's[%d:%d]' % (S_OUT, S_OUT + 3)
        e.vm('buffer_store_dwordx4 %s, v%d, %s, s%d offen' % (v(tg, 4), va, O, sT))
        e.vm('buffer_store_dwordx4 %s, v%d, %s, s%d offen offset:64' % (v(tg + 4, 4), va, O, sT))
        e.vm('buffer_store_dwordx2 %s, v%d, %s, s%d offen offset:128' % (v(tg + 8, 2), va + 1, O, sT))
        self.stamp('out stored')
        return self.finish()

    def _rd_wrap(self, rdX, sl):
        return rdX(0, sl)

    def splitk4(self, w4slot, xtok, NR, vCI, xfree, mid4):
        class PartMap(int):
            pass
        e = self.e
        p2 = [vXB + 64, vXB + 68, vXB + 72, vXB + 76, vE + 20]
        self.part_override = p2
        return self.splitk_gen(14, lambda s_, T: w4slot(5 * s_ + T), lambda q, s_: vXB + 4 * ((14 * q + s_) % NR), lambda q, s_: xtok[q, s_],
                               vCI, xfree, mid4, [[vCACC + 4 * T for T in range(5)], [vACC + 4 * T for T in range(5)], p2])

    def splitk_gen(self, ns, wreg, xreg, xtok, cinit, xfree, mid_barrier, parts):
        e = self.e
        vWr = vT + 0
        vRd = vT + 1
        e('v_add_u32 v%d, s%d, v%d' % (vWr, sPW, vLIN))
        for q in range(3):
            e('s_sub_u32 s%d, s%d, %d' % (sT, sW, 1 + q))
            e('s_and_b32 s%d, s%d, 3' % (sT, sT))
            e('s_mul_i32 s%d, s%d, 15360' % (sT, sT))
            e('s_add_u32 s%d, s%d, %d' % (sT, sT, 5120 * q))
            e('v_add_u32 v%d, s%d, v%d' % (vRd + q, sT, vLIN))
        pend = []
        for q in range(4):
            acc = vACC + 20 * (q & 1)
            cnt = 0
            for s_ in range(ns):
                t = xtok(q, s_)
                if t is not None:
                    e.wait(vm=t)
                for T in range(5):
                    if s_ == 0:
                        cin = '0' if (q < 3 or cinit is None) else v(cinit + 4 * T, 4)
                    else:
                        cin = v(acc + 4 * T, 4)
                    e('v_mfma_f32_16x16x32_bf16 %s, %s, %s, %s' % (v(acc + 4 * T, 4), wreg(s_, T), v(xreg(q, s_), 4), cin))
                    cnt += 1
                    if cnt >= 5 and pend:
                        pend.pop(0)()
                if xfree is not None:
                    xfree(q, s_)
            while pend:
                pend.pop(0)()
            if q < 3:
                for T in range(5):
                    pend.append(lambda acc=acc, T=T, q=q: e.lg('ds_write_b128 v%d, %s offset:%d' % (vWr, v(acc + 4 * T, 4), 5120 * q + 1024 * T)))
                if q == 2:
                    def bar():
                        mid_barrier(0)
                        e.wait(lg=e.last_lg())
                        e('s_barrier')
                        mid_barrier(1)
                    pend.append(bar)
                    for qq in range(3):
                        for T in range(5):
                            pend.append(lambda qq=qq, T=T: e.lg('ds_read_b128 %s, v%d offset:%d' % (v(parts[qq][T], 4), vRd + qq, 1024 * T)))
        acc = vACC + 20
        e.wait(lg=e.last_lg())
        P = lambda r: 'v[%d:%d]' % (r, r + 1)
        for k in (1, 2):
            for T in range(5):
                for i in (0, 2):
                    e('v_pk_add_f32 %s, %s, %s' % (P(parts[0][T] + i), P(parts[0][T] + i), P(parts[k][T] + i)))
        for T in range(5):
            for i in (0, 2):
                e('v_pk_add_f32 %s, %s, %s' % (P(acc + 4 * T + i), P(acc + 4 * T + i), P(parts[0][T] + i)))
        return acc

    def text(self):
        self.build()
        self.e('L_end:')
        self.e('s_endpgm')
        body = self.e.finalize()
        hdr = open('recurrent_scan__ssm_conv_h3__mixer_s_mlp__prompt.s.ref').read().split('; Override launch')[0]
        out = hdr
        out += '; Fused single-launch kernel: 32 row clusters x 8 column slices, one workgroup per CU.\n'
        out += '; @launch grid=(256,1,1) block=(256,1,1) lds=163840\n'
        out += '.amdgcn_target "amdgcn-amd-amdhsa--gfx950"\n.text\n'
        out += '.globl %s\n.p2align 8\n.type %s,@function\n%s:\n' % (NAME, NAME, NAME)
        out += body
        out += '''.section .rodata,"a"
.p2align 6
.amdhsa_kernel %s
  .amdhsa_next_free_vgpr 512
  .amdhsa_next_free_sgpr 102
  .amdhsa_accum_offset 256
  .amdhsa_group_segment_fixed_size 0
  .amdhsa_kernarg_size 112
  .amdhsa_user_sgpr_count 2
  .amdhsa_user_sgpr_kernarg_segment_ptr 1
  .amdhsa_system_sgpr_workgroup_id_x 1
  .amdhsa_float_denorm_mode_32 3
.end_amdhsa_kernel
''' % NAME
        return out


if __name__ == '__main__':
    import argparse, json
    ap = argparse.ArgumentParser()
    ap.add_argument('-o', default='k.s')
    ap.add_argument('--stop', type=int, default=99)
    ap.add_argument('--prof', action='store_true')
    ap.add_argument('--opts', default='{}')
    A = ap.parse_args()
    g = Gen(stop=A.stop, prof=A.prof, opts=json.loads(A.opts))
    t = g.text()
    open(A.o, 'w').write(t)
    if A.prof:
        open(A.o + '.names', 'w').write('\n'.join(g.names))
    print('instructions:', sum(1 for x in g.e.out if x.kind != 'none'))
```

```python
import sys, math
from emit import *

NAME = 'recurrent_scan__ssm_conv_h3__mixer_s_mlp__prompt_kernel'

H1 = 0x0000000
X1 = 0x0300000
HH = 0x0600000
W3P = 0x0D00000
W3H = 0x0F00000
W4P = 0x1000000
UU = 0x1300000
YT = 0x1900000
ST = 0x1C00000
FL = 0x1D00000
PROF = 0x1E00000
CH = 32768
OOB = 0x80000000
EPS = 1e-5
SPIN = 200000

S_X, S_K, S_V, S_W1, S_W2, S_W3, S_W4, S_OUT, S_WS, S_SK, S_SH, S_DBG, S_UN = 4, 8, 12, 16, 20, 24, 28, 32, 36, 40, 44, 48, 52
sC, sJ, sW, sCH, sCV = 56, 57, 58, 59, 60
sPW, sQW = 61, 62
sMASK = 63
sN0 = 64
sMQ = 66
sT = 70
sD = 90
sHALF = 91
sC1, sC2 = 92, 94
sEX = 96
sST = 98
sCNT = 100

vL, vR, vHQ, vLIN = 1, 2, 3, 4
vT = 5
vPROF = 23
vXR = 24
vX1P = 34
vM, vRS = 44, 45
vCM = 46
vCACC = 48
vXB = 80
vACC = 160
vE = 200


class Gen:
    def __init__(self, stop=99, prof=False, opts=None):
        self.e = Emit()
        self.stop = stop
        self.prof = prof
        self.nstamp = 0
        self.o = opts or {}

    def stamp(self, name=''):
        if not self.prof:
            return
        e = self.e
        e('s_memtime s[%d:%d]' % (sST, sST + 1))
        e('s_waitcnt lgkmcnt(0)')
        e.lg_done = e.lg_issued
        e('v_writelane_b32 v%d, s%d, %d ; stamp %s' % (vPROF, sST, self.nstamp, name))
        self.names = getattr(self, 'names', []) + [name]
        self.nstamp += 1

    def srd(self, d, off, size):
        e = self.e
        e('s_load_dwordx2 s[%d:%d], s[0:1], %d' % (d, d + 1, off))
        e('s_mov_b32 s%d, 0x%x' % (d + 2, size))
        e('s_mov_b32 s%d, 0x20000' % (d + 3))

    def poll(self, vaddr, nlanes, vtmp, soff='0', second=None):
        e = self.e
        lp = e.lab('L_poll')
        dn = e.lab('L_pdone')
        e('s_mov_b32 s%d, 0' % sCNT)
        if nlanes < 64:
            m = (1 << nlanes) - 1
            e('s_mov_b32 exec_lo, 0x%x' % (m & 0xffffffff))
            e('s_mov_b32 exec_hi, 0x%x' % (m >> 32))
        e(lp + ':')
        e.vm('buffer_load_dwordx2 v[%d:%d], v%d, s[%d:%d], %s offen sc1' % (vtmp, vtmp + 1, vaddr, S_WS, S_WS + 3, soff), counted=False)
        if second is not None:
            e.vm('buffer_load_dwordx2 v[%d:%d], v%d, s[%d:%d], %s offen sc1' % (vtmp + 2, vtmp + 3, second, S_WS, S_WS + 3, soff), counted=False)
        e('s_add_u32 s%d, s%d, 1' % (sCNT, sCNT))
        e('s_cmp_gt_u32 s%d, %d' % (sCNT, SPIN))
        e.wait_all(lg=False)
        e('s_cbranch_scc1 ' + dn)
        e('v_cmp_ne_u64 vcc, s[%d:%d], v[%d:%d]' % (sN0, sN0 + 1, vtmp, vtmp + 1))
        if second is not None:
            e('s_cbranch_vccnz ' + lp)
            e('v_cmp_ne_u64 vcc, s[%d:%d], v[%d:%d]' % (sN0, sN0 + 1, vtmp + 2, vtmp + 3))
        e('s_cbranch_vccnz ' + lp)
        e(dn + ':')
        if nlanes < 64:
            e('s_mov_b64 exec, -1')

    def flag(self, soff_reg, vtmp):
        e = self.e
        e('v_mov_b32 v%d, s%d' % (vtmp, sN0))
        e('v_mov_b32 v%d, s%d' % (vtmp + 1, sN0 + 1))
        e('v_mov_b32 v%d, 0' % (vtmp + 2))
        e('s_mov_b64 exec, 1')
        e.vm('buffer_store_dwordx2 v[%d:%d], v%d, s[%d:%d], s%d offen sc1' % (vtmp, vtmp + 1, vtmp + 2, S_WS, S_WS + 3, soff_reg), counted=False)
        e('s_mov_b64 exec, -1')

    def wg_flag(self, soff_expr_fn, vtmp):
        e = self.e
        sk = e.lab('L_nofl')
        e('s_cmp_lg_u32 s%d, 0' % sW)
        e('s_cbranch_scc1 ' + sk)
        soff_expr_fn(sT)
        self.flag(sT, vtmp)
        e(sk + ':')

    def unpack(self, dst, src):
        e = self.e
        e('v_lshlrev_b32 v%d, 16, v%d' % (dst, src))
        e('v_and_b32 v%d, s%d, v%d' % (dst + 1, sMASK, src))

    def normalize(self, regs, pair, tmp):
        e = self.e
        for g in range(0, len(regs), 4):
            grp = regs[g:g + 4]
            for i, d in enumerate(grp):
                self.unpack(tmp + 2 * i, d)
            for i, d in enumerate(grp):
                e('v_pk_fma_f32 v[%d:%d], v[%d:%d], v[%d:%d], v[%d:%d] op_sel:[0,0,1] op_sel_hi:[1,0,1]' % (
                    tmp + 2 * i, tmp + 2 * i + 1, tmp + 2 * i, tmp + 2 * i + 1, pair, pair + 1, pair, pair + 1))
            for i, d in enumerate(grp):
                e('v_cvt_pk_bf16_f32 v%d, v%d, v%d' % (d, tmp + 2 * i, tmp + 2 * i + 1))

    def gelu_pk(self, z, n, tmp):
        e = self.e
        P = lambda r: 'v[%d:%d]' % (r, r + 1)
        for i in range(0, n, 2):
            e('v_pk_mul_f32 %s, %s, %s' % (P(tmp + i), P(z + i), P(z + i)))
        for i in range(0, n, 2):
            e('v_pk_fma_f32 %s, %s, s[%d:%d], v[%d:%d] op_sel_hi:[1,0,0]' % (P(tmp + i), P(tmp + i), sC2, sC2 + 1, self.vC1, self.vC1 + 1))
        for i in range(0, n, 2):
            e('v_pk_mul_f32 %s, %s, %s' % (P(tmp + i), P(tmp + i), P(z + i)))
        for i in range(n):
            e('v_exp_f32 v%d, v%d' % (tmp + i, tmp + i))
        for i in range(0, n, 2):
            e('v_pk_add_f32 %s, %s, 1.0 op_sel_hi:[1,0]' % (P(tmp + i), P(tmp + i)))
        for i in range(n):
            e('v_rcp_f32 v%d, v%d' % (tmp + i, tmp + i))
        for i in range(0, n, 2):
            e('v_pk_mul_f32 %s, %s, %s' % (P(z + i), P(z + i), P(tmp + i)))

    def gelu_ops(self, z, t):
        return ['v_mul_f32 v%d, v%d, v%d' % (t, z, z),
                'v_fma_f32 v%d, v%d, s%d, v%d' % (t, t, sC2, self.vC1),
                'v_mul_f32 v%d, v%d, v%d' % (t, t, z),
                'v_exp_f32 v%d, v%d' % (t, t),
                'v_add_f32 v%d, 1.0, v%d' % (t, t),
                'v_rcp_f32 v%d, v%d' % (t, t),
                'v_mul_f32 v%d, v%d, v%d' % (z, z, t)]

    def finish(self):
        e = self.e
        if self.prof:
            e('s_lshl_b32 s%d, s2, 2' % sT)
            e('s_add_u32 s%d, s%d, s%d' % (sT, sT, sW))
            e('s_lshl_b32 s%d, s%d, 8' % (sT, sT))
            e('s_add_u32 s%d, s%d, 0x%x' % (sT, sT, PROF))
            e('v_lshlrev_b32 v%d, 2, v%d' % (vT, vL))
            e('buffer_store_dword v%d, v%d, s[%d:%d], s%d offen' % (vPROF, vT, S_WS, S_WS + 3, sT))
        e('s_branch L_end')

    def splitk(self, ns, wreg, xreg, xtok, cinit=None, mid_barrier=None):
        parts = [[b + 4 * T for T in range(5)] for b in self.part]
        return self.splitk_gen(ns, wreg, xreg, xtok, cinit, None, mid_barrier or (lambda ph: None), parts)

    def pack20(self, src, dst):
        e = self.e
        for i in range(10):
            e('v_cvt_pk_bf16_f32 v%d, v%d, v%d' % (dst + i, src + 2 * i, src + 2 * i + 1))

    def store_tile_cm(self, src, base, vrow):
        e = self.e
        a0, a1 = vT + 4, vT + 5
        e('v_lshl_add_u32 v%d, v%d, 15, v%d' % (a0, vHQ, vrow))
        e('v_lshrrev_b32 v%d, 1, v%d' % (a1, vHQ))
        e('v_lshl_add_u32 v%d, v%d, 15, v%d' % (a1, a1, vrow))
        e('v_and_b32 v%d, 1, v%d' % (vT + 6, vHQ))
        e('v_lshl_add_u32 v%d, v%d, 3, v%d' % (a1, vT + 6, a1))
        e('s_mul_i32 s%d, s%d, %d' % (sT, sJ, 10 * CH))
        e('s_add_u32 s%d, s%d, 0x%x' % (sT, sT, base))
        e('s_add_u32 s%d, s%d, %d' % (sT + 1, sT, 4 * CH))
        e('s_add_u32 s%d, s%d, %d' % (sT + 2, sT, 8 * CH))
        e.vm('buffer_store_dwordx4 %s, v%d, s[%d:%d], s%d offen sc1' % (v(src, 4), a0, S_WS, S_WS + 3, sT))
        e.vm('buffer_store_dwordx4 %s, v%d, s[%d:%d], s%d offen sc1' % (v(src + 4, 4), a0, S_WS, S_WS + 3, sT + 1))
        return e.vm('buffer_store_dwordx2 %s, v%d, s[%d:%d], s%d offen sc1' % (v(src + 8, 2), a1, S_WS, S_WS + 3, sT + 2))

    def tr_reads(self, vtp, vts, off, dst, file='a', vt2=None, vt3=None):
        e = self.e
        R = (lambda n: 'a[%d:%d]' % (n, n + 1)) if file == 'a' else (lambda n: 'v[%d:%d]' % (n, n + 1))
        tok = None
        for T in range(5):
            for e2 in range(2):
                if T == 4:
                    ad, o = vts, 128
                elif T == 2 and vt2 is not None:
                    ad, o = vt2, 0
                elif T == 3 and vt3 is not None:
                    ad, o = vt3, 0
                else:
                    ad, o = vtp, 64 * (T >> 1) + 8 * (T & 1)
                tok = e.lg('ds_read_b64_tr_b16 %s, v%d offset:%d' % (R(dst + 4 * T + 2 * e2), ad, off + o + 2560 * e2))
        return tok

    def conv_addr(self, rho0):
        e = self.e
        vF, vG, vG0, vGl = vT + 8, vT + 9, vT + 10, vT + 11
        t0, t1 = vT + 12, vT + 13
        e('v_and_b32 v%d, 3, v%d' % (t0, vR))
        e('v_mul_u32_u24 v%d, 4160, v%d' % (vF, t0))
        e('v_lshrrev_b32 v%d, 2, v%d' % (t0, vR))
        e('v_add_u32 v%d, v%d, v%d' % (t0, t0, vHQ))
        e('v_lshl_add_u32 v%d, v%d, 4, v%d' % (vF, t0, vF))
        e('s_add_u32 s%d, s%d, %d' % (sT, sQW, 64 * rho0))
        e('v_add_u32 v%d, s%d, v%d' % (vF, sT, vF))
        e('v_and_b32 v%d, 1, v%d' % (t0, vR))
        e('v_mul_u32_u24 v%d, 4128, v%d' % (t0, t0))
        e('s_add_u32 s%d, s%d, 16640' % (sT, sQW))
        e('v_add_u32 v%d, s%d, v%d' % (t0, sT, t0))
        e('v_add_u32 v%d, 4096, v%d' % (vGl, t0))
        e('v_lshrrev_b32 v%d, 1, v%d' % (t1, vR))
        e('v_lshlrev_b32 v%d, 6, v%d' % (t1, t1))
        e('v_sub_u32 v%d, v%d, v%d' % (t0, t0, t1))
        e('v_lshl_add_u32 v%d, v%d, 4, v%d' % (t0, vHQ, t0))
        e('v_add_u32 v%d, %d, v%d' % (vG, 448 + 64 * rho0, t0))
        e('v_add_u32 v%d, 3584, v%d' % (vG0, vG))
        e('v_min_u32 v%d, v%d, v%d' % (vG0, vG0, vGl))
        return vF, vG, vG0, vGl

    def conv_half(self, first):
        e = self.e
        sk = e.lab('L_noconv')
        e('s_cmp_eq_u32 s%d, 0' % sCV)
        e('s_cbranch_scc1 ' + sk)
        vF, vG, vG0, vGl = self.conv_addr(0 if first else 4)
        F = lambda i: vXB + 4 * i
        G = lambda i: vXB + 32 + 4 * i

        def rdF(i):
            e('ds_read_b128 %s, v%d offset:%d' % (v(F(i), 4), vF, 512 * i))

        def rdG(i):
            if i == 0:
                e('ds_read_b128 %s, v%d' % (v(G(0), 4), vG0))
            else:
                e('ds_read_b128 %s, v%d offset:%d' % (v(G(i), 4), vG, 512 * (7 - i)))
        for i in range(7, -1, -1):
            rdF(i)
            rdG(i)
        if first:
            fd = vXB + 64
            t0, t1 = vT + 12, vT + 13
            e('v_lshrrev_b32 v%d, 2, v%d' % (t0, vR))
            e('v_add_u32 v%d, v%d, v%d' % (t0, t0, vHQ))
            e('v_mov_b32 v%d, s%d' % (t1, sD))
            e('v_cmp_eq_u32 vcc, 3, v%d' % t0)
            e('v_cndmask_b32 v%d, 0, v%d, vcc' % (t1, t1))
            e('v_and_b32 v%d, 3, v%d' % (t0, vR))
            for dd in range(4):
                e('v_cmp_eq_u32 vcc, %d, v%d' % (3 - dd, t0))
                e('v_cndmask_b32 v%d, 0, v%d, vcc' % (fd + dd, t1))
            e('s_waitcnt lgkmcnt(0)')
            for b in range(8):
                e('v_mfma_f32_16x16x32_bf16 %s, %s, %s, 0' % (v(vCACC + 4 * b, 4), v(fd, 4), v(G(b), 4)))
        lp = e.lab('L_conv')
        e('s_mov_b32 s%d, 0' % sCNT)
        e(lp + ':')
        e('v_add_u32 v%d, 64, v%d' % (vF, vF))
        e('v_add_u32 v%d, 64, v%d' % (vG, vG))
        order7 = [(3, 4), (4, 3), (2, 5), (5, 2), (1, 6), (6, 1), (0, 7), (7, 0)]
        for n, (aa, bb) in enumerate(order7):
            e('s_waitcnt lgkmcnt(%d)' % (7 - n))
            e('v_mfma_f32_16x16x32_bf16 %s, %s, %s, %s' % (v(vCACC + 28, 4), v(F(aa), 4), v(G(bb), 4), v(vCACC + 28, 4)))
            if n == 0:
                e('v_add_u32 v%d, 3584, v%d' % (vG0, vG))
            if n == 1:
                e('v_min_u32 v%d, v%d, v%d' % (vG0, vG0, vGl))
        rdF(7)
        rdG(7)
        for tau in range(6, -1, -1):
            for aa in range(tau + 1):
                e('v_mfma_f32_16x16x32_bf16 %s, %s, %s, %s' % (v(vCACC + 4 * tau, 4), v(F(aa), 4), v(G(tau - aa), 4), v(vCACC + 4 * tau, 4)))
            rdF(tau)
            rdG(tau)
        e('s_add_u32 s%d, s%d, 1' % (sCNT, sCNT))
        e('s_cmp_lt_u32 s%d, 4' % sCNT)
        e('s_cbranch_scc1 ' + lp)
        e('s_waitcnt lgkmcnt(0)')
        if not first:
            t0, t1 = vT + 12, vT + 13
            e('v_lshrrev_b32 v%d, 1, v%d' % (t0, vR))
            e('v_lshlrev_b32 v%d, 6, v%d' % (t0, t0))
            e('v_lshl_add_u32 v%d, v%d, 4, v%d' % (t0, vHQ, t0))
            e('v_and_b32 v%d, 1, v%d' % (t1, vR))
            e('v_lshl_add_u32 v%d, v%d, 3, v%d' % (t0, t1, t0))
            e('s_lshl_b32 s%d, s%d, 12' % (sT, sCH))
            e('s_add_u32 s%d, s%d, 0x%x' % (sT, sT, YT))
            for tau in range(8):
                b = vCACC + 4 * tau
                e('v_cvt_pk_bf16_f32 v%d, v%d, v%d' % (b, b, b + 1))
                e('v_cvt_pk_bf16_f32 v%d, v%d, v%d' % (b + 1, b + 2, b + 3))
                e.vm('buffer_store_dwordx2 %s, v%d, s[%d:%d], s%d offen offset:%d sc1' % (v(b, 2), t0, S_WS, S_WS + 3, sT, 512 * tau), counted=False)
            e('s_waitcnt vmcnt(0)')
            e('s_mul_i32 s%d, s%d, 80' % (sT, sJ))
            e('s_sub_u32 s%d, s%d, s%d' % (sT, sCH, sT))
            e('s_lshr_b32 s%d, s%d, 3' % (sT + 1, sT))
            e('s_lshl_b32 s%d, s%d, 7' % (sT + 1, sT + 1))
            e('s_and_b32 s%d, s%d, 7' % (sT, sT))
            e('s_lshl_b32 s%d, s%d, 3' % (sT, sT))
            e('s_add_u32 s%d, s%d, s%d' % (sT, sT, sT + 1))
            e('s_lshl_b32 s%d, s%d, 11' % (sT + 1, sJ))
            e('s_add_u32 s%d, s%d, s%d' % (sT, sT, sT + 1))
            e('s_add_u32 s%d, s%d, 0x%x' % (sT, sT, FL + 0x8000))
            self.flag(sT, vT + 13)
        e(sk + ':')

    def row_flag_fn(self, ph):
        def f(d):
            e = self.e
            e('s_lshl_b32 s%d, s%d, 7' % (d, sC))
            e('s_lshl_b32 s%d, s%d, 3' % (d + 1, sJ))
            e('s_add_u32 s%d, s%d, s%d' % (d, d, d + 1))
            e('s_add_u32 s%d, s%d, 0x%x' % (d, d, FL + ph * 4096))
        return f

    def poll_row8(self, ph):
        e = self.e
        e('s_lshl_b32 s%d, s%d, 7' % (sT, sC))
        e('s_add_u32 s%d, s%d, 0x%x' % (sT, sT, FL + ph * 4096))
        e('v_lshlrev_b32 v%d, 3, v%d' % (vT + 4, vL))
        self.poll(vT + 4, 8, vT + 5, soff='s%d' % sT)

    def build(self):
        e = self.e
        WS = 's[%d:%d]' % (S_WS, S_WS + 3)
        e('s_cmp_ge_u32 s2, 256')
        e('s_cbranch_scc1 L_end')
        if self.prof:
            e('s_memrealtime s[%d:%d]' % (sT, sT + 1))
        self.srd(S_X, 0, 2621440)
        self.srd(S_K, 8, 2621440)
        self.srd(S_V, 16, 2621440)
        self.srd(S_SH, 24, 5120)
        self.srd(S_SK, 32, 4096)
        self.srd(S_W1, 56, 819200)
        self.srd(S_W2, 64, 819200)
        self.srd(S_W3, 72, 2211840)
        self.srd(S_W4, 80, 2211840)
        self.srd(S_OUT, 88, 2621440)
        self.srd(S_DBG, 96, 256)
        self.srd(S_WS, 104, 268435456)
        e('s_load_dwordx2 s[%d:%d], s[0:1], 40' % (sT + 2, sT + 3))
        e('s_memrealtime s[%d:%d]' % (sN0, sN0 + 1))
        e('v_and_b32 v%d, 63, v0' % vL)
        e('v_lshrrev_b32 v%d, 6, v0' % vT)
        e('v_and_b32 v%d, 15, v%d' % (vR, vL))
        e('v_readfirstlane_b32 s%d, v%d' % (sW, vT))
        e('v_lshrrev_b32 v%d, 4, v%d' % (vHQ, vL))
        e('v_lshlrev_b32 v%d, 4, v%d' % (vLIN, vL))
        e('s_and_b32 s%d, s2, 7' % sC)
        e('s_lshl_b32 s%d, s%d, 2' % (sC, sC))
        e('s_lshr_b32 s%d, s2, 6' % sJ)
        e('s_add_u32 s%d, s%d, s%d' % (sC, sC, sJ))
        e('s_bfe_u32 s%d, s2, 0x30003' % sJ)
        e('s_mov_b32 s%d, 0xffff0000' % sMASK)
        for q in range(4):
            e('s_add_u32 s%d, s%d, %d' % (sMQ + q, sW, 1 + q))
            e('s_and_b32 s%d, s%d, 3' % (sMQ + q, sMQ + q))
        e('s_mul_i32 s%d, s%d, 15360' % (sPW, sW))
        e('s_mul_i32 s%d, s%d, 25600' % (sQW, sW))
        e('s_sub_u32 s%d, 138240, s%d' % (sQW, sQW))
        e('s_lshr_b32 s%d, s%d, 1' % (sT + 4, sC))
        e('s_mul_i32 s%d, s%d, 5' % (sT + 4, sT + 4))
        e('s_and_b32 s%d, s%d, 1' % (sT + 5, sC))
        e('s_mul_i32 s%d, s%d, 3' % (sT + 6, sT + 5))
        e('s_add_u32 s%d, s%d, s%d' % (sT + 4, sT + 4, sT + 6))
        e('s_add_u32 s%d, s%d, s%d' % (sT + 4, sT + 4, sW))
        e('s_mul_i32 s%d, s%d, 80' % (sCH, sJ))
        e('s_add_u32 s%d, s%d, s%d' % (sCH, sCH, sT + 4))
        e('s_add_u32 s%d, s%d, s%d' % (sT + 5, sT + 5, sW))
        e('s_cmp_lt_u32 s%d, 3' % (sT + 5))
        e('s_cselect_b32 s%d, 1, 0' % sCV)
        e('s_cselect_b32 s%d, s%d, 0' % (sCH, sCH))
        if self.prof:
            e('v_mov_b32 v%d, 0' % vPROF)
        e('s_waitcnt lgkmcnt(0)')
        if self.prof:
            e('v_writelane_b32 v%d, s%d, 63' % (vPROF, sT))
        self.stamp('start')
        nn = e.lab('L_nononce')
        e('s_or_b32 s%d, s2, s%d' % (sT + 4, sW))
        e('s_cmp_lg_u32 s%d, 0' % (sT + 4))
        e('s_cbranch_scc1 ' + nn)
        e('s_or_b32 s%d, s%d, 0x40000000' % (sN0 + 1, sN0 + 1))
        e('v_mov_b32 v%d, s%d' % (vT + 1, sN0))
        e('v_mov_b32 v%d, s%d' % (vT + 2, sN0 + 1))
        e('v_mov_b32 v%d, 0' % (vT + 3))
        e('s_mov_b64 exec, 1')
        e.vm('buffer_store_dwordx2 v[%d:%d], v%d, s[%d:%d], 0 offen sc1' % (vT + 1, vT + 2, vT + 3, S_DBG, S_DBG + 3), counted=False)
        e('s_mov_b64 exec, -1')
        e(nn + ':')
        e('s_lshr_b32 s%d, s%d, 1' % (sT + 4, sCH))
        e('s_lshl_b32 s%d, s%d, 2' % (sT + 4, sT + 4))
        e('s_load_dword s%d, s[%d:%d], s%d' % (sD, sT + 2, sT + 3, sT + 4))
        e('s_lshl_b32 s%d, s%d, 12' % (sT + 4, sCH))
        e('s_add_u32 s%d, s%d, s%d' % (S_SK, S_SK, sT + 4))
        e('s_addc_u32 s%d, s%d, 0' % (S_SK + 1, S_SK + 1))

        if self.o.get('probe'):
            src = self.o.get('probe_src', 48)
            e('s_load_dwordx2 s[%d:%d], s[0:1], %d' % (S_UN, S_UN + 1, src))
            e('s_mov_b32 s%d, 2621440' % (S_UN + 2))
            e('s_mov_b32 s%d, 0x20000' % (S_UN + 3))
            e('s_waitcnt lgkmcnt(0)')
            e('s_mul_i32 s%d, s2, 10240' % sT)
            e('v_mov_b32 v%d, 0' % vT)
            for i in range(self.o['probe']):
                e('buffer_load_dword v%d, v%d, s[%d:%d], s%d offen' % (vT + 1, vT, S_UN, S_UN + 3, sT))
                e('s_add_u32 s%d, s%d, 256' % (sT, sT))
                e('s_waitcnt vmcnt(0)')
            self.stamp('probe')
        va = vT
        e('v_mul_u32_u24 v%d, 1280, v%d' % (va, vR))
        e('v_lshl_add_u32 v%d, v%d, 4, v%d' % (va, vHQ, va))
        e('s_mul_i32 s%d, s%d, %d' % (sT, sC, 64 * 1280))
        e('s_mul_i32 s%d, s%d, 320' % (sT + 1, sW))
        e('s_add_u32 s%d, s%d, s%d' % (sT + 1, sT + 1, sT))
        xtok = {}
        for q in range(4):
            e('s_mul_i32 s%d, s%d, %d' % (sT + 2, sMQ + q, 16 * 1280))
            e('s_add_u32 s%d, s%d, s%d' % (sT + 2, sT + 2, sT + 1))
            for s_ in range(5):
                xtok[q, s_] = e.vm('buffer_load_dwordx4 %s, v%d, s[%d:%d], s%d offen offset:%d' % (v(vXB + 20 * q + 4 * s_, 4), va, S_X, S_X + 3, sT + 2, 64 * s_))
        e('s_mul_i32 s%d, s%d, %d' % (sT + 1, sW, 16 * 1280))
        e('s_add_u32 s%d, s%d, s%d' % (sT + 1, sT + 1, sT))
        e('s_mul_i32 s%d, s%d, 160' % (sT + 2, sJ))
        e('s_add_u32 s%d, s%d, s%d' % (sT + 1, sT + 1, sT + 2))
        e.vm('buffer_load_dwordx4 %s, v%d, s[%d:%d], s%d offen' % (v(vXR, 4), va, S_X, S_X + 3, sT + 1))
        e.vm('buffer_load_dwordx4 %s, v%d, s[%d:%d], s%d offen offset:64' % (v(vXR + 4, 4), va, S_X, S_X + 3, sT + 1))
        e('v_mul_u32_u24 v%d, 1280, v%d' % (va + 1, vR))
        e('v_lshl_add_u32 v%d, v%d, 3, v%d' % (va + 1, vHQ, va + 1))
        xowntok = e.vm('buffer_load_dwordx2 %s, v%d, s[%d:%d], s%d offen offset:128' % (v(vXR + 8, 2), va + 1, S_X, S_X + 3, sT + 1))
        self.stamp('x issued')
        vW = vE
        vKP = vE + 5
        vU = vE + 10
        for n in range(5):
            t0, t1 = vT + 2, vT + 3
            e('v_add_u32 v%d, %d, v%d' % (t0, 64 * n, vL))
            e('v_mul_u32_u24 v%d, 6554, v%d' % (t1, t0))
            e('v_lshrrev_b32 v%d, 16, v%d' % (t1, t1))
            e('v_mul_u32_u24 v%d, 10, v%d' % (vU + n, t1))
            e('v_sub_u32 v%d, v%d, v%d' % (vU + n, t0, vU + n))
            e('v_bfe_u32 v%d, v%d, 2, 2' % (t0, t1))
            e('v_lshlrev_b32 v%d, 3, v%d' % (t0, t0))
            e('v_and_b32 v%d, 3, v%d' % (vKP + n, t1))
            e('v_add_u32 v%d, v%d, v%d' % (vKP + n, vKP + n, t0))
            e('v_lshrrev_b32 v%d, 4, v%d' % (t1, t1))
            e('v_lshl_add_u32 v%d, v%d, 2, v%d' % (vKP + n, t1, vKP + n))
            e('v_mul_u32_u24 v%d, 1280, v%d' % (vW + n, vKP + n))
            e('v_lshl_add_u32 v%d, v%d, 4, v%d' % (vW + n, vU + n, vW + n))
        sB = sT + 4
        sDst = sT + 8
        sPitch, sSrc, sIs3 = sT + 13, sT + 14, sT + 15
        l4, lP = e.lab('L_u4'), e.lab('L_up')
        e('s_cmp_ge_u32 s%d, 20' % sC)
        e('s_cbranch_scc1 ' + l4)
        e('s_cmp_eq_u32 s%d, 3' % sW)
        e('s_cbranch_scc1 ' + l4)
        e('s_mov_b32 s%d, 3456' % sPitch)
        e('s_mul_i32 s%d, s%d, %d' % (sSrc, sC, 32 * 3456))
        e('s_mul_i32 s%d, s%d, 384' % (sT, sJ))
        e('s_mul_i32 s%d, s%d, 3' % (sT + 1, sJ))
        e('s_lshr_b32 s%d, s%d, 1' % (sT + 1, sT + 1))
        e('s_lshl_b32 s%d, s%d, 5' % (sT + 1, sT + 1))
        e('s_add_u32 s%d, s%d, 3072' % (sT + 1, sT + 1))
        e('s_mul_i32 s%d, s%d, %d' % (sT + 2, sJ, 4 * 61440))
        e('s_lshl_b32 s%d, s%d, 10' % (sT + 3, sC))
        e('s_add_u32 s%d, s%d, s%d' % (sT + 2, sT + 2, sT + 3))
        e('s_add_u32 s%d, s%d, 0x%x' % (sT + 2, sT + 2, W3P))
        e('s_mul_i32 s%d, s%d, 40960' % (sIs3, sJ))
        e('s_add_u32 s%d, s%d, s%d' % (sT + 3, sT + 3, sIs3))
        e('s_add_u32 s%d, s%d, 0x%x' % (sT + 3, sT + 3, W3H))
        lB, lC = e.lab('L_uB'), e.lab('L_uC')
        e('s_cmp_eq_u32 s%d, 1' % sW)
        e('s_cbranch_scc1 ' + lB)
        e('s_cmp_eq_u32 s%d, 2' % sW)
        e('s_cbranch_scc1 ' + lC)
        for i, o in enumerate([0, 96, 128, 64]):
            e('s_add_u32 s%d, s%d, %d' % (sB + i, sT, o))
        for i, o in enumerate([0, 20480, 61440, 61440 + 20480, 40960]):
            e('s_add_u32 s%d, s%d, %d' % (sDst + i, sT + 2, o))
        e('s_mov_b32 s%d, 2' % sIs3)
        e('s_branch ' + lP)
        e(lB + ':')
        for i, o in enumerate([192, 160, 256]):
            e('s_add_u32 s%d, s%d, %d' % (sB + i, sT, o))
        e('s_mov_b32 s%d, s%d' % (sB + 3, sT + 1))
        for i, o in enumerate([2 * 61440, 2 * 61440 + 20480, 61440 + 40960, 2 * 61440 + 40960]):
            e('s_add_u32 s%d, s%d, %d' % (sDst + i, sT + 2, o))
        e('s_mov_b32 s%d, s%d' % (sDst + 4, sT + 3))
        e('s_mov_b32 s%d, 3' % sIs3)
        e('s_branch ' + lP)
        e(lC + ':')
        for i, o in enumerate([288, 352]):
            e('s_add_u32 s%d, s%d, %d' % (sB + i, sT, o))
        e('s_add_u32 s%d, s%d, 32' % (sB + 2, sT + 1))
        e('s_mov_b32 s%d, 0x%x' % (sB + 3, OOB))
        for i, o in enumerate([3 * 61440, 3 * 61440 + 20480, 3 * 61440 + 40960]):
            e('s_add_u32 s%d, s%d, %d' % (sDst + i, sT + 2, o))
        e('s_add_u32 s%d, s%d, 20480' % (sDst + 3, sT + 3))
        e('s_mov_b32 s%d, 0x%x' % (sDst + 4, OOB))
        e('s_mov_b32 s%d, 3' % sIs3)
        e('s_branch ' + lP)
        e(l4 + ':')
        e('s_sub_u32 s%d, s%d, 20' % (sT, sC))
        e('s_lshl_b32 s%d, s%d, 2' % (sT, sT))
        e('s_add_u32 s%d, s%d, s%d' % (sT, sT, sW))
        e('s_add_u32 s%d, s%d, 20' % (sT, sT))
        e('s_cmp_lt_u32 s%d, 20' % sC)
        e('s_cselect_b32 s%d, s%d, s%d' % (sT, sC, sT))
        e('s_mov_b32 s%d, 1280' % sPitch)
        e('s_mul_i32 s%d, s%d, %d' % (sSrc, sT, 32 * 1280))
        e('s_mul_i32 s%d, s%d, 160' % (sT + 1, sJ))
        for i, o in enumerate([0, 64, 96, 128]):
            e('s_add_u32 s%d, s%d, %d' % (sB + i, sT + 1, o))
        e('s_mul_i32 s%d, s%d, 286720' % (sT + 2, sJ))
        e('s_mul_i32 s%d, s%d, 5120' % (sT + 3, sT))
        e('s_add_u32 s%d, s%d, s%d' % (sT + 2, sT + 2, sT + 3))
        e('s_add_u32 s%d, s%d, 0x%x' % (sT + 2, sT + 2, W4P))
        e('s_cmp_lt_u32 s%d, 54' % sT)
        e('s_cselect_b32 s%d, s%d, 0x%x' % (sT + 2, sT + 2, OOB))
        e('s_cselect_b32 s%d, s%d, 0x%x' % (sSrc, sSrc, OOB))
        for i in range(5):
            e('s_add_u32 s%d, s%d, %d' % (sDst + i, sT + 2, 1024 * i))
        e('s_mov_b32 s%d, 0' % sIs3)
        e(lP + ':')
        e('s_cmp_lg_u32 s%d, 0' % sIs3)
        e('s_cselect_b32 s%d, s%d, s%d' % (S_UN, S_W3, S_W4))
        e('s_cselect_b32 s%d, s%d, s%d' % (S_UN + 1, S_W3 + 1, S_W4 + 1))
        e('s_mov_b32 s%d, 2211840' % (S_UN + 2))
        e('s_mov_b32 s%d, 0x20000' % (S_UN + 3))
        e('s_add_u32 s%d, s%d, %d' % (sT, sQW, 2 * 5120))
        for n in range(5):
            t0, t1, t2 = vT + 2, vT + 3, vT + 4
            u = vU + n
            e('v_and_b32 v%d, 1, v%d' % (t1, u))
            e('v_lshlrev_b32 v%d, 4, v%d' % (t1, t1))
            e('v_lshlrev_b32 v%d, 4, v%d' % (t0, u))
            e('v_add_u32 v%d, s%d, v%d' % (t0, sB, t0))
            for i, lim in ((1, 4), (2, 6), (3, 8)):
                e('v_add_u32 v%d, s%d, v%d' % (t2, sB + i, t1))
                e('v_cmp_le_u32 vcc, %d, v%d' % (lim, u))
                e('v_cndmask_b32 v%d, v%d, v%d, vcc' % (t0, t0, t2))
            e('v_mad_u32_u24 v%d, v%d, s%d, v%d' % (t0, vKP + n, sPitch, t0))
            e('s_add_u32 m0, s%d, %d' % (sT, 1024 * n))
            untok = e.vm('buffer_load_dwordx4 v%d, s[%d:%d], s%d offen lds' % (t0, S_UN, S_UN + 3, sSrc))
        self.stamp('unit issued')
        vKV = vACC
        vK = vACC
        vV = vCACC
        vSH = vACC + 24
        vQD = vT + 16
        t0, t1 = vT + 2, vT + 3
        e('v_cmp_le_u32 vcc, 20, v%d' % vL)
        e('v_cndmask_b32 v%d, 0, 1, vcc' % t0)
        e('v_mul_u32_u24 v%d, 20, v%d' % (t1, t0))
        e('v_sub_u32 v%d, v%d, v%d' % (t1, vL, t1))
        e('s_lshl_b32 s%d, s%d, 6' % (sT, sC))
        e('s_lshl_b32 s%d, s%d, 4' % (sT + 1, sW))
        e('s_add_u32 s%d, s%d, s%d' % (sT, sT, sT + 1))
        e('v_lshl_add_u32 v%d, v%d, 3, s%d' % (t0, t0, sT))
        e('s_mul_i32 s%d, s%d, 80' % (sT + 1, sJ))
        e('v_lshl_add_u32 v%d, v%d, 2, s%d' % (vT + 4, t1, sT + 1))
        e('v_sub_u32 v%d, 2040, v%d' % (vQD, t0))
        e('v_lshlrev_b32 v%d, 1, v%d' % (vQD, vQD))
        e('v_lshl_add_u32 v%d, v%d, 12, v%d' % (vQD, vT + 4, vQD))
        e('v_subrev_u32 v%d, 4, v%d' % (t0, t0))
        e('v_mul_i32_i24 v%d, 1280, v%d' % (t0, t0))
        e('v_lshl_add_u32 v%d, v%d, 1, v%d' % (t0, vT + 4, t0))
        e('v_lshlrev_b32 v%d, 3, v%d' % (vT + 4, vT + 4))
        e('s_mov_b32 exec_lo, -1')
        e('s_mov_b32 exec_hi, 0xff')
        e.vm('buffer_load_dwordx4 %s, v%d, s[%d:%d], 0 offen' % (v(vSH, 4), vT + 4, S_SH, S_SH + 3))
        e.vm('buffer_load_dwordx4 %s, v%d, s[%d:%d], 0 offen offset:16' % (v(vSH + 4, 4), vT + 4, S_SH, S_SH + 3))
        for i in range(12):
            kvtok = e.vm('buffer_load_dwordx2 %s, v%d, s[%d:%d], 0 offen' % (v(vK + 2 * i, 2), t0, S_K, S_K + 3))
            if i >= 3:
                kvtok = e.vm('buffer_load_dwordx2 %s, v%d, s[%d:%d], 0 offen' % (v(vV + 2 * (i - 3), 2), t0, S_V, S_V + 3))
            if i < 11:
                e('v_add_u32 v%d, 1280, v%d' % (t0, t0))
        e('s_mov_b64 exec, -1')
        self.stamp('kv issued')
        sWo = sT + 16
        e('s_mul_i32 s%d, s%d, %d' % (sWo, sW, 160 * 1280))
        e('s_mul_i32 s%d, s%d, 160' % (sT, sJ))
        e('s_add_u32 s%d, s%d, s%d' % (sWo, sWo, sT))

        def wdma(srd, s_, ldsbase_s, ldsoff):
            tok = None
            e('s_add_u32 s%d, s%d, %d' % (sT, sWo, s_ * 32 * 1280))
            for n in range(5):
                e('s_add_u32 m0, s%d, %d' % (ldsbase_s, ldsoff + 1024 * n))
                tok = e.vm('buffer_load_dwordx4 v%d, s[%d:%d], s%d offen lds' % (vW + n, srd, srd + 3, sT))
            return tok
        w1tok = []
        for s_ in range(5):
            w1tok.append(wdma(S_W1, s_, sPW if s_ < 3 else sQW, 5120 * (s_ if s_ < 3 else s_ - 3)))
        self.stamp('issued')
        vTP, vTS, vTPq, vTSq = vE + 15, vE + 16, vE + 17, vE + 18
        e('v_lshrrev_b32 v%d, 2, v%d' % (t0, vL))
        e('v_mul_u32_u24 v%d, 160, v%d' % (t0, t0))
        e('v_and_b32 v%d, 3, v%d' % (t1, vL))
        e('v_lshl_add_u32 v%d, v%d, 4, v%d' % (vTP, t1, t0))
        e('v_lshl_add_u32 v%d, v%d, 3, v%d' % (vTS, t1, t0))
        e('v_add_u32 v%d, s%d, v%d' % (vTPq, sQW, vTP))
        e('v_add_u32 v%d, s%d, v%d' % (vTSq, sQW, vTS))
        e('v_add_u32 v%d, s%d, v%d' % (vTP, sPW, vTP))
        e('v_add_u32 v%d, s%d, v%d' % (vTS, sPW, vTS))
        c1 = -2.0 * math.log2(math.e) * math.sqrt(2.0 / math.pi)
        self.vC1 = 46 + 1 - 1
        self.vC1 = vT + 17
        e('v_mov_b32 v%d, %s' % (self.vC1, f2h(c1)))
        e('s_mov_b32 s%d, %s' % (sC2, f2h(c1 * 0.044715)))
        e('v_lshlrev_b32 v%d, 4, v%d' % (vCM, vR))
        e('v_lshl_add_u32 v%d, v%d, 15, v%d' % (vCM, vHQ, vCM))
        e('s_lshl_b32 s%d, s%d, 10' % (sT, sC))
        e('v_add_u32 v%d, s%d, v%d' % (vCM, sT, vCM))

        vOne = vE + 20
        vSA = vE + 24
        for i in range(4):
            e('v_mov_b32 v%d, 0x3f803f80' % (vOne + i))
        for q in range(4):
            for s_ in range(5):
                e.wait(vm=xtok[q, s_])
                x = v(vXB + 20 * q + 4 * s_, 4)
                sa, ga = v(vSA + 8 * q, 4), v(vSA + 8 * q + 4, 4)
                e('v_mfma_f32_16x16x32_bf16 %s, %s, %s, %s' % (sa, v(vOne, 4), x, '0' if s_ == 0 else sa))
                e('v_mfma_f32_16x16x32_bf16 %s, %s, %s, %s' % (ga, x, x, '0' if s_ == 0 else ga))
        self.stamp('x landed')
        sM = sT
        for i, m in enumerate((0x22222222, 0x44444444, 0x88888888)):
            e('s_mov_b32 s%d, 0x%x' % (sM + 2 * i, m))
            e('s_mov_b32 s%d, 0x%x' % (sM + 2 * i + 1, m))
        e('s_add_u32 s%d, s%d, %d' % (sT + 6, sQW, 4 * 5120))
        e('v_lshl_add_u32 v%d, v%d, 3, s%d' % (vT + 2, vR, sT + 6))
        for q in range(4):
            g = vSA + 8 * q + 4
            for i in range(3):
                e('v_cndmask_b32 v%d, v%d, v%d, s[%d:%d]' % (g, g, g + 1 + i, sM + 2 * i, sM + 2 * i + 1))
            e('v_mov_b32 v%d, v%d' % (g + 1, g))
            e('v_mov_b32 v%d, v%d' % (g, g - 4))
            e('s_lshl_b32 s%d, s%d, 7' % (sT + 7, sMQ + q))
            e('v_add_u32 v%d, s%d, v%d' % (g + 2, sT + 7, vT + 2))
        e('s_mov_b32 exec_lo, 0x00f0000f')
        e('s_mov_b32 exec_hi, 0xf0000f00')
        for q in range(4):
            g = vSA + 8 * q + 4
            e.lg('ds_write_b64 v%d, %s' % (g + 2, v(g, 2)))
        e('s_mov_b64 exec, -1')
        e.wait(lg=e.last_lg())
        e('s_barrier')
        e('v_lshlrev_b32 v%d, 3, v%d' % (vT + 2, vR))
        for q in range(4):
            e('s_lshl_b32 s%d, s%d, 7' % (sT + 7, sMQ + q))
            e('s_add_u32 s%d, s%d, %d' % (sT + 7, sT + 7, 61440 + 4 * 5120))
            e('v_add_u32 v%d, s%d, v%d' % (vT + 3, sT + 7, vT + 2))
            e('v_add_u32 v%d, %d, v%d' % (vT + 4, 51200, vT + 3))
            for ww in range(4):
                e.lg('ds_read_b64 %s, v%d offset:%d' % (v(vSA + 8 * q + 2 * ww, 2), vT + 3 + (ww >> 1), 25600 * (ww & 1)))
        e.wait(lg=e.last_lg())
        P = lambda r: 'v[%d:%d]' % (r, r + 1)
        vPR = vE + 20
        e('s_mov_b32 s%d, %s' % (sT, f2h(1.0 / 640)))
        e('s_mov_b32 s%d, %s' % (sT + 1, f2h(EPS)))
        for q in range(4):
            b = vSA + 8 * q
            e('v_pk_add_f32 %s, %s, %s' % (P(b), P(b), P(b + 2)))
            e('v_pk_add_f32 %s, %s, %s' % (P(b + 4), P(b + 4), P(b + 6)))
            e('v_pk_add_f32 %s, %s, %s' % (P(b), P(b), P(b + 4)))
            e('v_mul_f32 v%d, s%d, v%d' % (b, sT, b))
            e('v_mul_f32 v%d, s%d, v%d' % (b + 1, sT, b + 1))
            e('v_fma_f32 v%d, -v%d, v%d, v%d' % (b + 1, b, b, b + 1))
            e('v_max_f32 v%d, 0, v%d' % (b + 1, b + 1))
            e('v_add_f32 v%d, s%d, v%d' % (b + 2, sT + 1, b + 1))
            e('v_rsq_f32 v%d, v%d' % (b + 2, b + 2))
            e('v_mul_f32 v%d, v%d, v%d' % (b + 3, b + 2, b + 2))
            e('v_fma_f32 v%d, v%d, v%d, s%d' % (b + 3, b + 3, b + 1, sT + 1))
            e('v_rsq_f32 v%d, v%d' % (b + 3, b + 3))
            e('v_mul_f32 v%d, v%d, v%d' % (vPR + 2 * q, b + 2, b + 3))
            e('v_mul_f32 v%d, -v%d, v%d' % (vPR + 2 * q + 1, b, vPR + 2 * q))
            if q == 3:
                e('v_mov_b32 v%d, v%d' % (vRS - 1, b + 2))
                e('v_mul_f32 v%d, -v%d, v%d' % (vRS, b, b + 2))
        for q in range(4):
            self.normalize([vXB + 20 * q + i for i in range(20)], vPR + 2 * q, vSA + 8)
        self.stamp('normalized')

        vUF = vSA
        vT2, vT3 = vT + 2, vT + 3
        e('s_cmp_eq_u32 s%d, 3' % sIs3)
        e('s_cselect_b32 s%d, -1, 0' % (sT + 2))
        e('s_cselect_b32 s%d, -1, 0' % (sT + 3))
        e('v_add_u32 v%d, 64, v%d' % (vT2, vTPq))
        e('v_add_u32 v%d, 64, v%d' % (vT + 4, vTSq))
        e('v_cndmask_b32 v%d, v%d, v%d, s[%d:%d]' % (vT2, vT2, vT + 4, sT + 2, sT + 3))
        e('v_add_u32 v%d, 72, v%d' % (vT3, vTPq))
        e('v_add_u32 v%d, 96, v%d' % (vT + 4, vTSq))
        e('v_cndmask_b32 v%d, v%d, v%d, s[%d:%d]' % (vT3, vT3, vT + 4, sT + 2, sT + 3))
        e.wait(vm=untok)
        tk = self.tr_reads(vTPq, vTSq, 2 * 5120, vUF, file='v', vt2=vT2, vt3=vT3)
        e.wait(lg=tk)
        for T in range(5):
            e.vm('buffer_store_dwordx4 %s, v%d, %s, s%d offen sc1' % (v(vUF + 4 * T, 4), vLIN, WS, sDst + T))

        self.stamp('unit done')
        e.wait(vm=kvtok)
        e('s_mov_b32 exec_lo, -1')
        e('s_mov_b32 exec_hi, 0xff')
        vSK = vE + 28 + 0
        vKF = vE + 44
        vKF = vCACC + 18
        vKF = vACC + 32
        for ch in range(4):
            for tp in range(4):
                src = vSH + 2 * ch + (tp >> 1)
                if tp & 1:
                    e('v_and_b32 v%d, s%d, v%d' % (vSK + 4 * tp + ch, sMASK, src))
                else:
                    e('v_lshlrev_b32 v%d, 16, v%d' % (vSK + 4 * tp + ch, src))
        vO = vE + 44
        c1_last = None
        for cp in range(2):
            outr = [vO + 2 * i for i in range(6)] + [vSH + 2 * i for i in range(3)]
            kf = lambda row: vKF + 2 * (row & 3)
            for row in range(12):
                self.unpack(kf(row), vK + 2 * row + cp)
                if row >= 3:
                    o = outr[row - 3]
                    tmpv = vT + 5
                    self.unpack(tmpv, vV + 2 * (row - 3) + cp)
                    e('v_pk_mul_f32 %s, %s, %s' % (P(o), P(kf(row)), P(vSK + 2 * cp)))
                    for tp in range(1, 4):
                        e('v_pk_fma_f32 %s, %s, %s, %s' % (P(o), P(kf(row - tp)), P(vSK + 4 * tp + 2 * cp), P(o)))
                    e('v_pk_mul_f32 %s, %s, %s' % (P(o), P(o), P(tmpv)))
            for cc in range(2):
                for par in (1, 0):
                    pk = vT + 7 + 0
                    pk = (vT + 7) if par else (vT + 11)
                    top = 8 if par else 7
                    for d in range(4):
                        e('v_cvt_pk_bf16_f32 v%d, v%d, v%d' % (pk + d, outr[top - 2 * d] + cc, outr[top - 2 * d - 1] + cc))
                    e('s_mov_b32 s%d, 0x%x' % (sT, UU + par * 640 * 4096 + (2 * cp + cc) * 4096))
                    c1_last = e.vm('buffer_store_dwordx4 %s, v%d, %s, s%d offen sc1' % (v(pk, 4), vQD, WS, sT))
        e('s_mov_b64 exec, -1')
        self.stamp('prep done')

        lp, dn = e.lab('L_np'), e.lab('L_nd')
        for s_ in range(5):
            e.wait(vm=w1tok[s_])
            if s_ < 3:
                tk = self.tr_reads(vTP, vTS, 5120 * s_, 20 * s_)
            else:
                tk = self.tr_reads(vTPq, vTSq, 5120 * (s_ - 3), 20 * s_)
        e.wait(lg=tk)
        self.stamp('w1 frags')
        e('v_mov_b32 v%d, 0' % (vT + 4))
        e('s_mov_b32 s%d, 0' % sCNT)
        e(lp + ':')
        e.vm('buffer_load_dwordx2 v[%d:%d], v%d, s[%d:%d], 0 offen sc1' % (vT + 5, vT + 6, vT + 4, S_DBG, S_DBG + 3), counted=False)
        e('s_add_u32 s%d, s%d, 1' % (sCNT, sCNT))
        e('s_cmp_gt_u32 s%d, %d' % (sCNT, SPIN))
        e.wait_all(lg=False)
        e('v_readfirstlane_b32 s%d, v%d' % (sN0, vT + 5))
        e('v_readfirstlane_b32 s%d, v%d' % (sN0 + 1, vT + 6))
        e('s_cbranch_scc1 ' + dn)
        e('s_cmp_eq_u32 s%d, 0' % (sN0 + 1))
        e('s_cbranch_scc1 ' + lp)
        e(dn + ':')
        self.stamp('nonce')
        w2tok = [wdma(S_W2, s_, sQW, 5120 * s_) for s_ in range(4)]

        self.stamp('w2 issued')
        self.part = [vXB, vXB + 20, vXB + 40]

        def mid1(ph):
            if ph == 1:
                def fa(d):
                    e('s_lshl_b32 s%d, s%d, 9' % (d, sJ))
                    e('s_lshr_b32 s%d, s%d, 3' % (d + 1, sC))
                    e('s_lshl_b32 s%d, s%d, 7' % (d + 1, d + 1))
                    e('s_add_u32 s%d, s%d, s%d' % (d, d, d + 1))
                    e('s_and_b32 s%d, s%d, 7' % (d + 1, sC))
                    e('s_lshl_b32 s%d, s%d, 3' % (d + 1, d + 1))
                    e('s_add_u32 s%d, s%d, s%d' % (d, d, d + 1))
                    e('s_add_u32 s%d, s%d, 0x%x' % (d, d, FL + 0x4000))
                self.wg_flag(fa, vT + 5)
                w2tok.append(wdma(S_W2, 4, sQW, 5120 * 4))
        acc = self.splitk(5, lambda s_, T: a(20 * s_ + 4 * T, 4), lambda q, s_: vXB + 20 * q + 4 * s_, lambda q, s_: None, mid_barrier=mid1)
        self.stamp('P1 mfma')
        self.gelu_pk(acc, 20, vXB + 20)
        self.pack20(acc, vXB)
        vRow = vT + 7
        e('s_lshr_b32 s%d, s%d, 1' % (sT + 4, sJ))
        e('s_lshr_b32 s%d, s%d, 1' % (sT + 5, sT + 4))
        e('s_add_u32 s%d, s%d, 1' % (sT + 5, sT + 5))
        e('s_sub_u32 s%d, 0, s%d' % (sT + 6, sT + 5))
        e('s_bitcmp1_b32 s%d, 0' % (sT + 4))
        e('s_cselect_b32 s%d, s%d, s%d' % (sT + 5, sT + 6, sT + 5))
        e('s_lshl_b32 s%d, s%d, 6' % (sT + 6, sC))
        e('s_lshl_b32 s%d, s%d, 4' % (sT + 7, sW))
        e('s_add_u32 s%d, s%d, s%d' % (sT + 6, sT + 6, sT + 7))
        e('s_add_u32 s%d, s%d, s%d' % (sT + 5, sT + 5, sT + 6))
        e('v_add_u32 v%d, s%d, v%d' % (vRow, sT + 5, vR))
        e('v_cmp_gt_u32 vcc, 2048, v%d' % vRow)
        e('v_lshlrev_b32 v%d, 4, v%d' % (vRow, vRow))
        e('v_mov_b32 v%d, 0x%x' % (vT + 8, OOB))
        e('v_cndmask_b32 v%d, v%d, v%d, vcc' % (vRow, vT + 8, vRow))
        tok = self.store_tile_cm(vXB, H1, vRow)
        e.wait(vm=tok)
        e('s_barrier')
        self.wg_flag(self.row_flag_fn(0), vT + 5)
        self.stamp('h flagged')
        if self.stop <= 1:
            return self.finish()

        for s_ in range(5):
            tk = self.tr_reads(vTPq, vTSq, 5120 * s_, 20 * s_)
        vCI = vE + 20
        for i in range(10):
            self.unpack(vCI + 2 * i, vXR + i)
        for i in range(10):
            e('v_pk_fma_f32 %s, %s, v[44:45], v[44:45] op_sel:[0,0,1] op_sel_hi:[1,0,1]' % (P(vCI + 2 * i), P(vCI + 2 * i)))
        e('v_lshrrev_b32 v%d, 3, v%d' % (vT + 4, vL))
        e('v_lshlrev_b32 v%d, 7, v%d' % (vT + 4, vT + 4))
        e('v_and_b32 v%d, 7, v%d' % (vT + 5, vL))
        e('v_lshl_add_u32 v%d, v%d, 3, v%d' % (vT + 4, vT + 5, vT + 4))
        e('s_lshl_b32 s%d, s%d, 9' % (sT, sJ))
        e('s_add_u32 s%d, s%d, 0x%x' % (sT, sT, FL + 0x4000))
        self.poll(vT + 4, 32, vT + 5, soff='s%d' % sT)
        e.wait(lg=tk)
        self.stamp('prep seen')
        sk = e.lab('L_nocd')
        e('s_cmp_eq_u32 s%d, 0' % sCV)
        e('s_cbranch_scc1 ' + sk)
        for cc in range(4):
            e('v_add_u32 v%d, %d, v%d' % (vT + 4, 4 + 4 * cc, vLIN))
            for n in range(4):
                e('s_add_u32 m0, s%d, %d' % (sQW, 4160 * cc + 64))
                e.vm('buffer_load_dwordx4 v%d, s[%d:%d], 0 offen offset:%d lds' % (vT + 4, S_SK, S_SK + 3, 1024 * n), counted=False)
        for par in range(2):
            e('s_lshl_b32 s%d, s%d, 12' % (sT, sCH))
            e('s_add_u32 s%d, s%d, 0x%x' % (sT, sT, UU + par * 640 * 4096))
            e('s_add_u32 m0, s%d, %d' % (sQW, 16640 + 4128 * par))
            for n in range(4):
                e.vm('buffer_load_dwordx4 v%d, %s, s%d offen offset:%d sc1 lds' % (vLIN, WS, sT, 1024 * n), counted=False)
        e('v_add_u32 v%d, v%d, v%d' % (vT + 4, vR, vHQ))
        e('v_lshlrev_b32 v%d, 2, v%d' % (vT + 4, vT + 4))
        e('v_subrev_u32 v%d, 60, v%d' % (vT + 4, vT + 4))
        e.vm('buffer_load_dword v%d, v%d, s[%d:%d], 0 offen' % (47, vT + 4, S_SK, S_SK + 3), counted=False)
        e(sk + ':')
        sS3 = sT + 17
        e('s_lshl_b32 s%d, s%d, 2' % (sT, sJ))
        e('s_add_u32 s%d, s%d, s%d' % (sT, sT, sW))
        e('s_mul_i32 s%d, s%d, 61440' % (sS3, sT))
        e('s_add_u32 s%d, s%d, 0x%x' % (sS3, sS3, W3P))
        e('s_mul_i32 s%d, s%d, 3' % (sT, sJ))
        e('s_add_u32 s%d, s%d, s%d' % (sT + 1, sT, sW))
        e('s_and_b32 s%d, s%d, 1' % (sHALF, sT + 1))
        e('s_lshr_b32 s%d, s%d, 1' % (sT + 1, sT + 1))
        e('s_lshr_b32 s%d, s%d, 1' % (sT, sT))
        e('s_sub_u32 s%d, s%d, s%d' % (sT, sT + 1, sT))
        e('s_lshl_b32 s%d, s%d, 1' % (sT + 2, sJ))
        e('s_add_u32 s%d, s%d, s%d' % (sT, sT, sT + 2))
        e('s_mul_i32 s%d, s%d, 20480' % (sS3 + 1, sT))
        e('s_add_u32 s%d, s%d, 0x%x' % (sS3 + 1, sS3 + 1, W3H))
        e('s_add_u32 s%d, s%d, 96' % (sS3 + 2, sT + 1))
        e('s_cmp_eq_u32 s%d, 3' % sW)
        e('s_cselect_b32 s%d, 0x%x, s%d' % (sS3 + 1, OOB, sS3 + 1))
        e('s_cselect_b32 s%d, 0, s%d' % (sHALF, sHALF))

        def slot(i):
            if i < 39:
                return a(100 + 4 * i, 4)
            if i < 64:
                return a(4 * (i - 39), 4)
            return v(vE + 24 + 4 * (i - 64), 4)

        def w3slot(f):
            return slot(f if f < 72 else f - 72)

        def w4slot(g):
            return slot(g + 8 if g < 64 else g - 64)
        w3tok = {}

        def ld_w3(f):
            ps, r_ = divmod(f, 40)
            s_, T = divmod(r_, 2)
            if ps == 0:
                base, off = sS3, T * 20480 + s_ * 1024
            elif T == 0:
                base, off = sS3, 40960 + s_ * 1024
            else:
                base, off = sS3 + 1, s_ * 1024
            e('s_add_u32 s%d, s%d, %d' % (sT + 16, base, off & ~0xfff))
            w3tok[f] = e.vm('buffer_load_dwordx4 %s, v%d, %s, s%d offen offset:%d sc1' % (w3slot(f), vLIN, WS, sT + 16, off & 0xfff))
        n_pre1 = self.o.get('w3pre1', 24)
        for f in range(n_pre1):
            ld_w3(f)
        e('s_bitcmp1_b32 s%d, 0' % sW)
        e('s_cselect_b32 s%d, 1, -1' % sT)
        e('s_add_u32 s%d, s%d, s%d' % (sT, sT, sC))
        e('s_cmp_lt_u32 s%d, 32' % sT)
        e('s_cselect_b32 s%d, s%d, s%d' % (sT, sT, sC))
        e('s_sub_u32 s%d, s%d, s%d' % (sT, sT, sC))
        e('s_lshl_b32 s%d, s%d, 7' % (sT, sT))
        e('v_lshrrev_b32 v%d, 1, v%d' % (vT + 4, vL))
        e('v_mul_lo_u32 v%d, s%d, v%d' % (vT + 4, sT, vT + 4))
        e('v_and_b32 v%d, 1, v%d' % (vT + 5, vL))
        e('v_lshl_add_u32 v%d, v%d, 3, v%d' % (vT + 4, vT + 5, vT + 4))
        e('s_lshl_b32 s%d, s%d, 7' % (sT, sC))
        e('s_lshl_b32 s%d, s%d, 4' % (sT + 1, sW))
        e('s_add_u32 s%d, s%d, s%d' % (sT, sT, sT + 1))
        e('s_add_u32 s%d, s%d, 0x%x' % (sT, sT, FL))
        e('v_add_u32 v%d, s%d, v%d' % (vT + 4, sT, vT + 4))
        vXA = vE
        e('s_lshr_b32 s%d, s%d, 1' % (sT + 5, sW))
        e('s_add_u32 s%d, s%d, 1' % (sT + 5, sT + 5))
        e('s_sub_u32 s%d, 0, s%d' % (sT + 6, sT + 5))
        e('s_bitcmp1_b32 s%d, 0' % sW)
        e('s_cselect_b32 s%d, s%d, s%d' % (sT + 5, sT + 5, sT + 6))
        e('s_lshl_b32 s%d, s%d, 6' % (sT + 6, sC))
        e('s_add_u32 s%d, s%d, s%d' % (sT + 5, sT + 5, sT + 6))
        e('v_mov_b32 v%d, 0x%x' % (vT + 8, OOB))
        for q in range(4):
            e('s_lshl_b32 s%d, s%d, 4' % (sT + 6, sMQ + q))
            e('s_add_u32 s%d, s%d, s%d' % (sT + 6, sT + 6, sT + 5))
            e('v_add_u32 v%d, s%d, v%d' % (vT + 7, sT + 6, vR))
            e('s_lshl_b32 s%d, s%d, 8' % (sT + 6, sMQ + q))
            e('v_cmp_gt_u32 vcc, 2048, v%d' % (vT + 7))
            e('v_add_u32 v%d, s%d, v%d' % (vT + 7, sT + 6, vCM))
            e('v_cndmask_b32 v%d, v%d, v%d, vcc' % (vXA + q, vT + 8, vT + 7))
        self.poll(vT + 4, 4, vT + 5)
        self.stamp('h seen')
        e('s_mul_i32 s%d, s%d, %d' % (sT, sW, 20 * CH))
        for s_ in range(5):
            e('s_add_u32 s%d, s%d, 0x%x' % (sT + 1 + s_, sT, H1 + s_ * 4 * CH))
        xtok = {}
        for q in range(4):
            for s_ in range(5):
                xtok[q, s_] = e.vm('buffer_load_dwordx4 %s, v%d, %s, s%d offen sc1' % (v(vXB + 20 * q + 4 * s_, 4), vXA + q, WS, sT + 1 + s_))
        sk = e.lab('L_nocp')
        e('s_cmp_eq_u32 s%d, 0' % sCV)
        e('s_cbranch_scc1 ' + sk)
        e('v_mul_u32_u24 v%d, 4160, v%d' % (vT + 4, vHQ))
        e('v_lshl_add_u32 v%d, v%d, 2, v%d' % (vT + 4, vR, vT + 4))
        e('v_add_u32 v%d, s%d, v%d' % (vT + 4, sQW, vT + 4))
        e.lg('ds_write_b32 v%d, v47' % (vT + 4), counted=False)
        e('v_and_b32 v%d, 3, v%d' % (vT + 4, vL))
        e('v_lshlrev_b32 v%d, 2, v%d' % (vT + 4, vT + 4))
        e('v_bfe_u32 v%d, v%d, 2, 1' % (vT + 5, vL))
        e('v_mul_u32_u24 v%d, 4128, v%d' % (vT + 5, vT + 5))
        e('s_add_u32 s%d, s%d, %d' % (sT + 6, sQW, 16640 + 4096))
        e('v_add3_u32 v%d, v%d, v%d, s%d' % (vT + 4, vT + 4, vT + 5, sT + 6))
        e('v_mov_b32 v%d, 0' % (vT + 5))
        e('s_mov_b64 exec, 0xff')
        e.lg('ds_write_b32 v%d, v%d' % (vT + 4, vT + 5), counted=False)
        e('s_mov_b64 exec, -1')
        e('s_bitcmp1_b32 s%d, 0' % sCH)
        e('s_cselect_b32 s%d, 16, 0' % (sT + 6))
        e('s_lshr_b32 s%d, s%d, s%d' % (sD, sD, sT + 6))
        e('s_and_b32 s%d, s%d, 0xffff' % (sD, sD))
        e(sk + ':')

        self.part = [vXB, vXB + 20, vXB + 40]
        acc = self.splitk(5, lambda s_, T: a(20 * s_ + 4 * T, 4), lambda q, s_: vXB + 20 * q + 4 * s_, lambda q, s_: xtok[q, s_], cinit=vCI)
        self.stamp('P2 mfma')
        self.pack20(acc, vX1P)
        e('s_lshl_b32 s%d, s%d, 6' % (sT + 6, sC))
        e('s_lshl_b32 s%d, s%d, 4' % (sT + 7, sW))
        e('s_add_u32 s%d, s%d, s%d' % (sT + 6, sT + 6, sT + 7))
        e('v_add_lshl_u32 v%d, s%d, v%d, 4' % (vRow, sT + 6, vR))
        self.store_tile_cm(vX1P, X1, vRow)
        tq = vXB
        for i in range(0, 20, 2):
            e('v_pk_mul_f32 %s, %s, %s' % (P(tq + i), P(acc + i), P(acc + i)))
        for base in (acc, tq):
            n = 20
            regs = [base + i for i in range(0, 20, 2)]
            while len(regs) > 1:
                nxt = []
                for i in range(0, len(regs) - 1, 2):
                    e('v_pk_add_f32 %s, %s, %s' % (P(regs[i]), P(regs[i]), P(regs[i + 1])))
                    nxt.append(regs[i])
                if len(regs) & 1:
                    nxt.append(regs[-1])
                regs = nxt
            e('v_add_f32 v%d, v%d, v%d' % (base, base, base + 1))
        e('v_permlane32_swap_b32 v%d, v%d' % (acc, tq))
        e('v_add_f32 v%d, v%d, v%d' % (acc, acc, tq))
        e('v_mov_b32 v%d, v%d' % (tq, acc))
        e('v_permlane16_swap_b32 v%d, v%d' % (acc, tq))
        e('v_add_f32 v%d, v%d, v%d' % (acc, acc, tq))
        e('v_lshrrev_b32 v%d, 1, v%d' % (vT + 4, vHQ))
        e('v_lshlrev_b32 v%d, 2, v%d' % (vT + 4, vT + 4))
        e('v_lshl_add_u32 v%d, v%d, 3, v%d' % (vT + 4, vR, vT + 4))
        e('s_lshl_b32 s%d, s%d, 12' % (sT, sC))
        e('s_lshl_b32 s%d, s%d, 9' % (sT + 1, sJ))
        e('s_add_u32 s%d, s%d, s%d' % (sT, sT, sT + 1))
        e('s_lshl_b32 s%d, s%d, 7' % (sT + 1, sW))
        e('s_add_u32 s%d, s%d, s%d' % (sT, sT, sT + 1))
        e('s_add_u32 s%d, s%d, 0x%x' % (sT, sT, ST))
        e('s_mov_b32 exec_lo, 0xffff')
        e('s_mov_b32 exec_hi, 0xffff')
        tok = e.vm('buffer_store_dword v%d, v%d, %s, s%d offen sc1' % (acc, vT + 4, WS, sT))
        e('s_mov_b64 exec, -1')
        n_pre2 = self.o.get('w3pre2', 72)
        for f in range(n_pre1, n_pre2):
            ld_w3(f)
        e.wait(vm=tok)
        e('s_barrier')
        self.wg_flag(self.row_flag_fn(1), vT + 5)
        self.stamp('x1 flagged')
        if self.stop <= 2:
            return self.finish()

        e('s_waitcnt lgkmcnt(0)')
        self.conv_half(True)
        self.stamp('conv a')
        self.poll_row8(1)
        self.stamp('x1 seen')
        vS8 = vACC
        e('v_lshlrev_b32 v%d, 3, v%d' % (vT + 4, vL))
        e('s_lshl_b32 s%d, s%d, 12' % (sT, sC))
        e('s_add_u32 s%d, s%d, 0x%x' % (sT, sT, ST))
        for jj in range(8):
            sttok = e.vm('buffer_load_dwordx2 %s, v%d, %s, s%d offen offset:%d sc1' % (v(vS8 + 2 * jj, 2), vT + 4, WS, sT, 512 * jj))
        e('s_mul_i32 s%d, s%d, %d' % (sT, sW, 20 * CH))
        xtok = {}
        for s_ in range(5):
            e('s_add_u32 s%d, s%d, 0x%x' % (sT + 1, sT, X1 + s_ * 4 * CH))
            for mt in range(4):
                xtok[s_, mt] = e.vm('buffer_load_dwordx4 %s, v%d, %s, s%d offen offset:%d sc1' % (v(vXB + 16 * s_ + 4 * mt, 4), vCM, WS, sT + 1, 256 * mt))
        e.wait(vm=sttok)
        for i in range(0, 8, 2):
            e('v_pk_add_f32 %s, %s, %s' % (P(vS8 + i), P(vS8 + i), P(vS8 + 8 + i)))
        e('v_pk_add_f32 %s, %s, %s' % (P(vS8), P(vS8), P(vS8 + 2)))
        e('v_pk_add_f32 %s, %s, %s' % (P(vS8 + 4), P(vS8 + 4), P(vS8 + 6)))
        e('v_pk_add_f32 %s, %s, %s' % (P(vS8), P(vS8), P(vS8 + 4)))
        b = vS8
        e('s_mov_b32 s%d, %s' % (sT + 2, f2h(1.0 / 640)))
        e('s_mov_b32 s%d, %s' % (sT + 3, f2h(EPS)))
        e('v_mul_f32 v%d, s%d, v%d' % (b, sT + 2, b))
        e('v_mul_f32 v%d, s%d, v%d' % (b + 1, sT + 2, b + 1))
        e('v_fma_f32 v%d, -v%d, v%d, v%d' % (b + 1, b, b, b + 1))
        e('v_max_f32 v%d, 0, v%d' % (b + 1, b + 1))
        e('v_add_f32 v%d, s%d, v%d' % (b + 1, sT + 3, b + 1))
        e('v_rsq_f32 v%d, v%d' % (b + 1, b + 1))
        e('v_mul_f32 v%d, -v%d, v%d' % (b, b, b + 1))
        vPR = vS8 + 8
        for src, k in ((b + 1, 0), (b, 1)):
            d = [vPR + 2 * mt + k for mt in range(4)]
            e('v_mov_b32 v%d, v%d' % (d[0], src))
            e('v_mov_b32 v%d, v%d' % (d[1], src))
            e('v_permlane16_swap_b32 v%d, v%d' % (d[0], d[1]))
            e('v_mov_b32 v%d, v%d' % (d[2], d[0]))
            e('v_mov_b32 v%d, v%d' % (d[3], d[1]))
            e('v_permlane32_swap_b32 v%d, v%d' % (d[0], d[2]))
            e('v_permlane32_swap_b32 v%d, v%d' % (d[1], d[3]))
        e('s_mul_i32 s%d, s%d, 20480' % (sT + 2, sW))
        e('v_add_u32 v%d, s%d, v%d' % (vT + 4, sT + 2, vLIN))
        for s_ in range(5):
            for mt in range(4):
                e.wait(vm=xtok[s_, mt])
                r0 = vXB + 16 * s_ + 4 * mt
                self.normalize([r0 + i for i in range(4)], vPR + 2 * mt, vACC + 16)
                e.lg('ds_write_b128 v%d, %s offset:%d' % (vT + 4, v(r0, 4), (4 * s_ + mt) * 1024))
        e.wait(lg=e.last_lg())
        e('s_barrier')
        self.stamp('X staged')

        vXa, vXb = vT + 4, vT + 5
        e('s_lshl_b32 s%d, s%d, 11' % (sT, sHALF))
        e('v_add_u32 v%d, s%d, v%d' % (vXa, sT, vLIN))
        e('s_sub_u32 s%d, 2048, s%d' % (sT, sT))
        e('v_add_u32 v%d, s%d, v%d' % (vXb, sT, vLIN))
        e('v_add_u32 v%d, 0x10000, v%d' % (vT + 6, vXa))
        e('v_add_u32 v%d, 0x10000, v%d' % (vT + 7, vXb))
        vA1 = vXB
        vA2 = vXB + 32
        vXF = vACC
        vG = vXB + 56
        vHA = vT + 8
        e('s_lshl_b32 s%d, s%d, 2' % (sT, sJ))
        e('s_add_u32 s%d, s%d, s%d' % (sT, sT, sW))
        e('s_mul_i32 s%d, s%d, %d' % (sT, sT, 6 * CH))
        sHS = sT + 10
        for sl in range(4):
            e('s_lshl_b32 s%d, s%d, 1' % (sT + 1, sHALF))
            e('s_xor_b32 s%d, s%d, %d' % (sT + 1, sT + 1, sl))
            e('s_lshl_b32 s%d, s%d, 8' % (sT + 1, sT + 1))
            e('s_add_u32 s%d, s%d, s%d' % (sHS + sl, sT + 1, sT))
            e('s_add_u32 s%d, s%d, 0x%x' % (sHS + sl, sHS + sl, HH))
        e('s_mul_i32 s%d, s%d, %d' % (sHS + 4, sS3 + 2, 2 * CH))
        e('s_sub_u32 s%d, s%d, s%d' % (sHS + 4, sHS + 4, sT))
        e('s_cmp_eq_u32 s%d, 3' % sW)
        e('s_cselect_b32 s%d, 0x%x, s%d' % (sHS + 4, OOB, sHS + 4))
        e('v_lshrrev_b32 v%d, 1, v%d' % (vHA + 1, vHQ))
        e('v_sub_u32 v%d, v%d, v%d' % (vHA + 1, vHA + 1, vHQ))
        e('v_lshlrev_b32 v%d, 15, v%d' % (vHA + 1, vHA + 1))
        e('v_add_u32 v%d, v%d, v%d' % (vHA + 1, vHA + 1, vCM))
        e('v_and_b32 v%d, 1, v%d' % (vHA, vHQ))
        e('v_lshl_add_u32 v%d, v%d, 3, v%d' % (vHA + 1, vHA, vHA + 1))
        sS4 = sT + 15
        e('s_mul_i32 s%d, s%d, 14' % (sT + 1, sW))
        e('s_cmp_eq_u32 s%d, 3' % sW)
        e('s_cselect_b32 s%d, 41, s%d' % (sT + 1, sT + 1))
        e('s_mov_b32 s%d, s%d' % (sT + 9, sT + 1))
        e('s_mul_i32 s%d, s%d, 5120' % (sS4, sT + 1))
        e('s_mul_i32 s%d, s%d, 286720' % (sT + 1, sJ))
        e('s_add_u32 s%d, s%d, s%d' % (sS4, sS4, sT + 1))
        e('s_add_u32 s%d, s%d, 0x%x' % (sS4, sS4, W4P))
        e('s_cmp_ge_u32 s%d, 2' % sW)
        e('s_cselect_b32 s%d, 0x%x, s%d' % (sT + 8, OOB, sS4))
        w4tok = {}

        def ld_w4(g):
            off = 1024 * g
            base = sS4 if g < 65 else sT + 8
            e('s_add_u32 s%d, s%d, %d' % (sT + 16, base, off & ~0xfff))
            w4tok[g] = e.vm('buffer_load_dwordx4 %s, v%d, %s, s%d offen offset:%d sc1' % (w4slot(g), vLIN, WS, sT + 16, off & 0xfff))

        def rdX(s_, sl):
            base = (vXa if sl < 2 else vXb)
            off = 4096 * s_ + 1024 * (sl & 1)
            if off >= 65536:
                base += 2
                off -= 65536
            return e.lg('ds_read_b128 %s, v%d offset:%d' % (v(vXF + 16 * (s_ & 1) + 4 * sl, 4), base, off))
        nxt3 = n_pre2
        nxt4 = 0
        hold4 = self.o.get('hold4', 52)
        xt = {}
        for sl in range(4):
            xt[0, sl] = rdX(0, sl)
        for s_ in range(20):
            for sl in range(4):
                if sl == 0:
                    e.wait(vm=w3tok[2 * s_ + 1])
                e.wait(lg=xt[s_, sl])
                for T in range(2):
                    ac = v(vA1 + 8 * sl + 4 * T, 4)
                    e('v_mfma_f32_16x16x32_bf16 %s, %s, %s, %s' % (ac, w3slot(2 * s_ + T), v(vXF + 16 * (s_ & 1) + 4 * sl, 4), '0' if s_ == 0 else ac))
                    if T == 0:
                        xt[s_ + 1, sl] = rdX((s_ + 1) % 20 + (20 if False else 0), sl) if s_ < 19 else self._rd_wrap(rdX, sl)
            for f in (2 * s_, 2 * s_ + 1):
                if nxt3 < 80 and nxt3 - 72 <= f:
                    ld_w3(nxt3)
                    nxt3 += 1
                elif nxt4 < hold4 and nxt4 + 8 <= f:
                    ld_w4(nxt4)
                    nxt4 += 1
        self.stamp('P3 pass1')
        work = []
        for sl in range(4):
            els = [vA1 + 8 * sl + i for i in range(8)]
            seqs = [self.gelu_ops(z, vG + i) for i, z in enumerate(els)]
            for k in range(7):
                for sq in seqs:
                    work.append(sq[k])
            for i in range(4):
                work.append('v_cvt_pk_bf16_f32 v%d, v%d, v%d' % (vG + 8 + 4 * (sl & 1) + i, els[2 * i], els[2 * i + 1]))
            work.append(('st', 'buffer_store_dwordx4 %s, v%d, %s, s%d offen sc1' % (v(vG + 8 + 4 * (sl & 1), 4), vCM, WS, sHS + sl)))

        def do_work(n):
            for _ in range(n):
                if not work:
                    return
                it = work.pop(0)
                if isinstance(it, tuple):
                    e.vm(it[1])
                else:
                    e(it)
        xt2 = {(0, sl): xt[20, sl] for sl in range(4)}
        for s_ in range(20):
            f0 = 40 + 2 * s_
            for sl in range(4):
                if sl == 0:
                    e.wait(vm=w3tok[f0 + 1])
                e.wait(lg=xt2[s_, sl])
                xf = v(vXF + 16 * (s_ & 1) + 4 * sl, 4)
                ac = v(vA2 + 4 * sl, 4)
                e('v_mfma_f32_16x16x32_bf16 %s, %s, %s, %s' % (ac, w3slot(f0), xf, '0' if s_ == 0 else ac))
                if s_ < 19:
                    xt2[s_ + 1, sl] = rdX(s_ + 1, sl)
                if s_ > 0:
                    do_work(1 if sl < 2 else 2)
                if sl < 2:
                    ac = v(vA2 + 16 + 4 * sl, 4)
                    e('v_mfma_f32_16x16x32_bf16 %s, %s, %s, %s' % (ac, w3slot(f0 + 1), xf, '0' if s_ == 0 else ac))
                    if s_ > 0:
                        do_work(3)
            for f in (f0, f0 + 1):
                if nxt4 < hold4 and nxt4 + 8 <= f:
                    ld_w4(nxt4)
                    nxt4 += 1
        do_work(1000)
        self.stamp('P3 pass2')
        self.gelu_pk(vA2, 24, vA1)
        for i in range(12):
            e('v_cvt_pk_bf16_f32 v%d, v%d, v%d' % (vA1 + i, vA2 + 2 * i, vA2 + 2 * i + 1))
        for sl in range(4):
            e('s_add_u32 s%d, s%d, %d' % (sT + 1, sHS + sl, 4 * CH))
            tok = e.vm('buffer_store_dwordx2 %s, v%d, %s, s%d offen sc1' % (v(vA1 + 2 * sl, 2), vHA + 1, WS, sT + 1))
        for sl in range(2):
            e('s_add_u32 s%d, s%d, s%d' % (sT + 1, sHS + sl, sHS + 4))
            tok = e.vm('buffer_store_dwordx2 %s, v%d, %s, s%d offen sc1' % (v(vA1 + 8 + 2 * sl, 2), vHA + 1, WS, sT + 1))
        while nxt4 < 70:
            ld_w4(nxt4)
            nxt4 += 1
        e.wait(vm=tok)
        e('s_barrier')
        self.wg_flag(self.row_flag_fn(2), vT + 5)
        self.stamp('H flagged')
        if self.stop <= 3:
            return self.finish()

        self.conv_half(False)
        self.stamp('conv b')
        vCI = vE
        for i in range(10):
            self.unpack(vCI + 2 * i, vX1P + i)
        self.poll_row8(2)
        self.stamp('H seen')
        NR = 20
        order = [(q, s_) for q in range(4) for s_ in range(14)]
        xtok = {}
        sXq = sT + 10
        e('s_mul_i32 s%d, s%d, %d' % (sT, sT + 9, 4 * CH))
        e('s_add_u32 s%d, s%d, 0x%x' % (sT, sT, HH))
        for q in range(4):
            e('s_lshl_b32 s%d, s%d, 8' % (sT + 1, sMQ + q))
            e('s_add_u32 s%d, s%d, s%d' % (sXq + q, sT + 1, sT))
        e('s_cmp_ge_u32 s%d, 2' % sW)
        e('s_cselect_b32 s%d, 0x%x, 0' % (sT + 14, OOB))
        e('s_add_u32 s%d, s%d, %d' % (sT + 14, sT + 14, 13 * 4 * CH))

        def ldX(i):
            q, s_ = order[i]
            if s_ < 13:
                e('s_add_u32 s%d, s%d, %d' % (sT + 16, sXq + q, s_ * 4 * CH))
            else:
                e('s_add_u32 s%d, s%d, s%d' % (sT + 16, sXq + q, sT + 14))
            xtok[q, s_] = e.vm('buffer_load_dwordx4 %s, v%d, %s, s%d offen sc1' % (v(vXB + 4 * (i % NR), 4), vCM, WS, sT + 16))
        for i in range(NR):
            ldX(i)
        st = {'n': NR}

        def xfree(q, s_):
            if st['n'] < 56:
                ldX(st['n'])
                st['n'] += 1
        self.part = [vCACC, vXB + 64, vCACC + 20]
        self.part = [vCACC, vACC, vXB + 64 - 4 * 0]
        vY = vE + 0
        ytok = []

        def mid4(ph):
            if ph == 0:
                sk = e.lab('L_noy')
                e('s_cmp_lg_u32 s%d, 0' % sW)
                e('s_cbranch_scc1 ' + sk)
                e('v_lshrrev_b32 v%d, 3, v%d' % (vT + 4, vL))
                e('v_lshlrev_b32 v%d, 7, v%d' % (vT + 4, vT + 4))
                e('v_and_b32 v%d, 7, v%d' % (vT + 5, vL))
                e('v_lshl_add_u32 v%d, v%d, 3, v%d' % (vT + 4, vT + 5, vT + 4))
                e('v_and_b32 v%d, 0xff, v%d' % (vT + 5, vT + 4))
                e('v_add_u32 v%d, 1024, v%d' % (vT + 5, vT + 5))
                e('s_lshl_b32 s%d, s%d, 11' % (sT, sJ))
                e('s_add_u32 s%d, s%d, 0x%x' % (sT, sT, FL + 0x8000))
                sv = (e.vm_done,)
                self.poll(vT + 4, 64, vT + 7, soff='s%d' % sT, second=vT + 5)
                e.vm_done = sv[0]
                e(sk + ':')
            else:
                t = vT + 4
                e('s_lshl_b32 s%d, s%d, 6' % (sT, sC))
                e('s_lshl_b32 s%d, s%d, 4' % (sT + 1, sW))
                e('s_add_u32 s%d, s%d, s%d' % (sT, sT, sT + 1))
                e('v_and_b32 v%d, 8, v%d' % (t, vR))
                e('v_and_b32 v%d, 1, v%d' % (t + 1, vR))
                e('v_lshl_add_u32 v%d, v%d, 2, v%d' % (t, t + 1, t))
                e('v_bfe_u32 v%d, v%d, 1, 2' % (t + 1, vR))
                e('v_add3_u32 v%d, v%d, v%d, s%d' % (t, t, t + 1, sT))
                e('v_lshlrev_b32 v%d, 1, v%d' % (t, t))
                e('v_lshl_add_u32 v%d, v%d, 14, v%d' % (t + 1, vHQ, t))
                e('v_lshl_add_u32 v%d, v%d, 15, v%d' % (t, vHQ, t))
                e('s_mul_i32 s%d, s%d, %d' % (sT, sJ, 80 * 4096))
                e('s_add_u32 s%d, s%d, 0x%x' % (sT, sT, YT))
                for T in range(5):
                    for r_ in range(4):
                        col = (32 * (T >> 1) + 4 * (T & 1) + r_) if T < 4 else 64 + r_
                        e('s_add_u32 s%d, s%d, %d' % (sT + 1, sT, col * 4096))
                        ytok.append(e.vm('buffer_load_short_d16_hi v%d, v%d, %s, s%d offen sc1' % (self.vYr[4 * T + r_], t if T < 4 else t + 1, WS, sT + 1)))
        self.vYr = [vCACC + 20 + i for i in range(12)] + [vX1P + i for i in range(8)]
        for r_ in self.vYr:
            e('v_mov_b32 v%d, 0' % r_)
        e.wait(vm=w4tok[69])
        self.part = [vCACC, vACC, None]
        acc = self.splitk4(w4slot, xtok, NR, vCI, xfree, mid4)
        self.stamp('P4 mfma')
        tg = vXB
        e('s_mov_b32 s%d, %s' % (sT + 2, f2h(-math.log2(math.e))))
        for i in range(0, 20, 2):
            e('v_pk_mul_f32 %s, %s, s[%d:%d] op_sel_hi:[1,0]' % (P(tg + i), P(acc + i), sT + 2, sT + 3))
        for i in range(20):
            e('v_exp_f32 v%d, v%d' % (tg + i, tg + i))
        for i in range(0, 20, 2):
            e('v_pk_add_f32 %s, %s, 1.0 op_sel_hi:[1,0]' % (P(tg + i), P(tg + i)))
        for i in range(20):
            e('v_rcp_f32 v%d, v%d' % (tg + i, tg + i))
        for i in range(0, 20, 2):
            e('v_pk_mul_f32 %s, %s, %s' % (P(acc + i), P(acc + i), P(tg + i)))
        xu = vXB + 20
        xn = vXB + 40
        for i in range(10):
            self.unpack(xu + 2 * i, vXR + i)
        for i in range(10):
            e('v_pk_fma_f32 %s, %s, v[44:45], v[44:45] op_sel:[0,0,1] op_sel_hi:[1,0,1]' % (P(xn + 2 * i), P(xu + 2 * i)))
        e.wait(vm=ytok[-1])
        for i in range(0, 20, 2):
            e('v_pk_mul_f32 %s, %s, %s' % (P(xn + i), P(xn + i), P(self.vYr[i])))
        for i in range(0, 20, 2):
            e('v_pk_fma_f32 %s, %s, %s, %s' % (P(acc + i), P(acc + i), P(xn + i), P(xu + i)))
        self.pack20(acc, tg)
        va = vT + 4
        e('v_mul_u32_u24 v%d, 1280, v%d' % (va, vR))
        e('v_lshl_add_u32 v%d, v%d, 3, v%d' % (va + 1, vHQ, va))
        e('v_lshl_add_u32 v%d, v%d, 4, v%d' % (va, vHQ, va))
        e('s_lshl_b32 s%d, s%d, 6' % (sT, sC))
        e('s_lshl_b32 s%d, s%d, 4' % (sT + 1, sW))
        e('s_add_u32 s%d, s%d, s%d' % (sT, sT, sT + 1))
        e('s_mul_i32 s%d, s%d, 1280' % (sT, sT))
        e('s_mul_i32 s%d, s%d, 160' % (sT + 1, sJ))
        e('s_add_u32 s%d, s%d, s%d' % (sT, sT, sT + 1))
        O = 's[%d:%d]' % (S_OUT, S_OUT + 3)
        e.vm('buffer_store_dwordx4 %s, v%d, %s, s%d offen' % (v(tg, 4), va, O, sT))
        e.vm('buffer_store_dwordx4 %s, v%d, %s, s%d offen offset:64' % (v(tg + 4, 4), va, O, sT))
        e.vm('buffer_store_dwordx2 %s, v%d, %s, s%d offen offset:128' % (v(tg + 8, 2), va + 1, O, sT))
        self.stamp('out stored')
        return self.finish()

    def _rd_wrap(self, rdX, sl):
        return rdX(0, sl)

    def splitk4(self, w4slot, xtok, NR, vCI, xfree, mid4):
        class PartMap(int):
            pass
        e = self.e
        p2 = [vXB + 64, vXB + 68, vXB + 72, vXB + 76, vE + 20]
        self.part_override = p2
        return self.splitk_gen(14, lambda s_, T: w4slot(5 * s_ + T), lambda q, s_: vXB + 4 * ((14 * q + s_) % NR), lambda q, s_: xtok[q, s_],
                               vCI, xfree, mid4, [[vCACC + 4 * T for T in range(5)], [vACC + 4 * T for T in range(5)], p2])

    def splitk_gen(self, ns, wreg, xreg, xtok, cinit, xfree, mid_barrier, parts):
        e = self.e
        vWr = vT + 0
        vRd = vT + 1
        e('v_add_u32 v%d, s%d, v%d' % (vWr, sPW, vLIN))
        for q in range(3):
            e('s_sub_u32 s%d, s%d, %d' % (sT, sW, 1 + q))
            e('s_and_b32 s%d, s%d, 3' % (sT, sT))
            e('s_mul_i32 s%d, s%d, 15360' % (sT, sT))
            e('s_add_u32 s%d, s%d, %d' % (sT, sT, 5120 * q))
            e('v_add_u32 v%d, s%d, v%d' % (vRd + q, sT, vLIN))
        pend = []
        for q in range(4):
            acc = vACC + 20 * (q & 1)
            cnt = 0
            for s_ in range(ns):
                t = xtok(q, s_)
                if t is not None:
                    e.wait(vm=t)
                for T in range(5):
                    if s_ == 0:
                        cin = '0' if (q < 3 or cinit is None) else v(cinit + 4 * T, 4)
                    else:
                        cin = v(acc + 4 * T, 4)
                    e('v_mfma_f32_16x16x32_bf16 %s, %s, %s, %s' % (v(acc + 4 * T, 4), wreg(s_, T), v(xreg(q, s_), 4), cin))
                    cnt += 1
                    if cnt >= 5 and pend:
                        pend.pop(0)()
                if xfree is not None:
                    xfree(q, s_)
            while pend:
                pend.pop(0)()
            if q < 3:
                for T in range(5):
                    pend.append(lambda acc=acc, T=T, q=q: e.lg('ds_write_b128 v%d, %s offset:%d' % (vWr, v(acc + 4 * T, 4), 5120 * q + 1024 * T)))
                if q == 2:
                    def bar():
                        mid_barrier(0)
                        e.wait(lg=e.last_lg())
                        e('s_barrier')
                        mid_barrier(1)
                    pend.append(bar)
                    for qq in range(3):
                        for T in range(5):
                            pend.append(lambda qq=qq, T=T: e.lg('ds_read_b128 %s, v%d offset:%d' % (v(parts[qq][T], 4), vRd + qq, 1024 * T)))
        acc = vACC + 20
        e.wait(lg=e.last_lg())
        P = lambda r: 'v[%d:%d]' % (r, r + 1)
        for k in (1, 2):
            for T in range(5):
                for i in (0, 2):
                    e('v_pk_add_f32 %s, %s, %s' % (P(parts[0][T] + i), P(parts[0][T] + i), P(parts[k][T] + i)))
        for T in range(5):
            for i in (0, 2):
                e('v_pk_add_f32 %s, %s, %s' % (P(acc + 4 * T + i), P(acc + 4 * T + i), P(parts[0][T] + i)))
        return acc

    def text(self):
        self.build()
        self.e('L_end:')
        self.e('s_endpgm')
        body = self.e.finalize()
        hdr = open('recurrent_scan__ssm_conv_h3__mixer_s_mlp__prompt.s.ref').read().split('; Override launch')[0]
        out = hdr
        out += '; Fused single-launch kernel: 32 row clusters x 8 column slices, one workgroup per CU.\n'
        out += '; @launch grid=(256,1,1) block=(256,1,1) lds=163840\n'
        out += '.amdgcn_target "amdgcn-amd-amdhsa--gfx950"\n.text\n'
        out += '.globl %s\n.p2align 8\n.type %s,@function\n%s:\n' % (NAME, NAME, NAME)
        out += body
        out += '''.section .rodata,"a"
.p2align 6
.amdhsa_kernel %s
  .amdhsa_next_free_vgpr 512
  .amdhsa_next_free_sgpr 102
  .amdhsa_accum_offset 256
  .amdhsa_group_segment_fixed_size 0
  .amdhsa_kernarg_size 112
  .amdhsa_user_sgpr_count 2
  .amdhsa_user_sgpr_kernarg_segment_ptr 1
  .amdhsa_system_sgpr_workgroup_id_x 1
  .amdhsa_float_denorm_mode_32 3
.end_amdhsa_kernel
''' % NAME
        return out


if __name__ == '__main__':
    import argparse, json
    ap = argparse.ArgumentParser()
    ap.add_argument('-o', default='k.s')
    ap.add_argument('--stop', type=int, default=99)
    ap.add_argument('--prof', action='store_true')
    ap.add_argument('--opts', default='{}')
    A = ap.parse_args()
    g = Gen(stop=A.stop, prof=A.prof, opts=json.loads(A.opts))
    t = g.text()
    open(A.o, 'w').write(t)
    if A.prof:
        open(A.o + '.names', 'w').write('\n'.join(g.names))
    print('instructions:', sum(1 for x in g.e.out if x.kind != 'none'))
```

```python
import re

REG_RE = re.compile(r'^(-?)(?:abs\()?\|?([vas])(?:(\d+)|\[(\d+):(\d+)\])\|?\)?$')


def regs_of(tok):
    tok = tok.strip()
    if tok == 'vcc':
        return {('s', 106), ('s', 107)}
    if tok in ('vcc_lo',):
        return {('s', 106)}
    if tok in ('vcc_hi',):
        return {('s', 107)}
    if tok == 'exec':
        return {('s', 126), ('s', 127)}
    if tok == 'm0':
        return {('s', 124)}
    m = REG_RE.match(tok)
    if not m:
        return set()
    f = m.group(2)
    if m.group(3) is not None:
        return {(f, int(m.group(3)))}
    return {(f, i) for i in range(int(m.group(4)), int(m.group(5)) + 1)}


TRANS = ('v_exp_f32', 'v_log_f32', 'v_rcp_f32', 'v_rsq_f32', 'v_sqrt_f32', 'v_sin_f32', 'v_cos_f32', 'v_rcp_iflag_f32')


class Ins:
    __slots__ = ('text', 'op', 'ops', 'mods', 'kind', 'defs', 'uses', 'passes', 'srcc', 'srcab', 'is_label', 'label',
                 'target', 'states', 'dpp', 'wide_store_data', 'lds_dma')

    def __init__(self, text):
        self.text = text
        t = text.split(';')[0].strip()
        self.is_label = t.endswith(':')
        self.label = t[:-1] if self.is_label else None
        self.target = None
        self.defs = set()
        self.uses = set()
        self.srcc = set()
        self.srcab = set()
        self.passes = 0
        self.states = 1
        self.dpp = False
        self.wide_store_data = set()
        self.lds_dma = False
        self.kind = 'other'
        self.op = ''
        if self.is_label or not t or t.startswith('.'):
            self.kind = 'none'
            self.states = 0
            return
        parts = t.split(None, 1)
        op = parts[0]
        self.op = op
        rest = parts[1] if len(parts) > 1 else ''
        ops = []
        depth = 0
        cur = ''
        for ch in rest:
            if ch in '[(':
                depth += 1
            if ch in '])':
                depth -= 1
            if ch == ',' and depth == 0:
                ops.append(cur.strip())
                cur = ''
            else:
                cur += ch
        if cur.strip():
            ops.append(cur.strip())
        mods = ''
        if ops:
            last = ops[-1].split(None, 1)
            if len(last) > 1:
                ops[-1] = last[0]
                mods = last[1]
        self.ops = ops
        self.mods = mods
        R = [regs_of(o) for o in ops]
        if op == 's_nop':
            self.kind = 'salu'
            self.states = int(ops[0], 0) + 1
        elif op.startswith('v_mfma'):
            self.kind = 'mfma'
            self.defs = R[0]
            self.srcab = R[1] | R[2]
            self.srcc = R[3]
            self.uses = self.srcab | self.srcc
            self.passes = 8 if '32x32x16' in op else 4
        elif op.startswith('v_'):
            self.kind = 'valu'
            if op.startswith('v_cmp'):
                self.defs = R[0]
                self.uses = set().union(*R[1:])
            elif op.startswith('v_permlane') and 'swap' in op:
                self.defs = R[0] | R[1]
                self.uses = R[0] | R[1]
            elif op.startswith(('v_add_co', 'v_sub_co', 'v_addc_co', 'v_subb_co', 'v_subrev_co')):
                self.defs = R[0] | R[1]
                self.uses = set().union(*R[2:])
            else:
                self.defs = R[0]
                self.uses = set().union(*R[1:]) if len(R) > 1 else set()
                if op.startswith(('v_fmac', 'v_dot2c', 'v_pk_fmac', 'v_writelane')) or 'dpp' in op:
                    self.uses |= R[0]
            if 'dpp' in op or 'row_' in mods or 'quad_perm' in mods:
                self.dpp = True
        elif op.startswith(('buffer_', 'global_')):
            self.kind = 'vmem'
            if 'lds' in mods.split():
                self.lds_dma = True
                self.uses = set().union(*R) | {('s', 124)}
            elif '_load' in op:
                self.defs = R[0]
                self.uses = set().union(*R[1:])
                if 'd16' in op:
                    self.uses |= R[0]
            elif '_store' in op:
                self.uses = set().union(*R)
                if 'x3' in op or 'x4' in op:
                    self.wide_store_data = R[0] if op.startswith('buffer_') else R[1]
            elif '_atomic' in op:
                self.uses = set().union(*R)
                if 'sc0' in mods:
                    self.defs = R[0]
                if 'cmpswap_x2' in op:
                    self.wide_store_data = R[0]
        elif op.startswith('ds_'):
            self.kind = 'ds'
            if '_read' in op or 'permute' in op or 'swizzle' in op:
                self.defs = R[0]
                self.uses = set().union(*R[1:]) if len(R) > 1 else set()
            else:
                self.uses = set().union(*R)
        elif op.startswith('s_'):
            self.kind = 'salu'
            if op.startswith(('s_cbranch', 's_branch')):
                self.target = ops[0]
            elif op.startswith(('s_cmp', 's_waitcnt', 's_barrier', 's_endpgm', 's_sleep', 's_setprio', 's_bitcmp')):
                self.uses = set().union(*R) if R else set()
            elif op.startswith(('s_load', 's_memtime', 's_memrealtime', 's_buffer_load')):
                self.kind = 'smem'
                self.defs = R[0]
                self.uses = set().union(*R[1:]) if len(R) > 1 else set()
            else:
                self.defs = R[0] if R else set()
                self.uses = set().union(*R[1:]) if len(R) > 1 else set()
                if 'saveexec' in op:
                    self.defs |= {('s', 126), ('s', 127)}


def vec(regs):
    return {x for x in regs if x[0] in 'va'}


def sc(regs):
    return {x for x in regs if x[0] == 's'}


def required(p, c):
    n = 0
    if p.kind == 'valu':
        vd = vec(p.defs)
        sd = sc(p.defs)
        if c.kind == 'mfma' and vd & c.uses:
            n = max(n, 2)
        if c.kind == 'valu':
            if c.op.startswith(('v_readlane', 'v_readfirstlane')) and vd & c.uses:
                n = max(n, 1)
            if (c.dpp or c.op.startswith('v_permlane')) and vd & c.uses:
                n = max(n, 2)
            if sd & c.uses:
                n = max(n, 4 if c.op.startswith(('v_readlane', 'v_writelane')) else 2)
            if p.op.startswith(TRANS) and vd & (c.uses | c.defs):
                n = max(n, 1)
        if c.kind in ('vmem', 'ds') and p.op.startswith(TRANS) and vd & c.uses:
            n = max(n, 1)
        if c.kind == 'vmem' and sd & c.uses:
            n = max(n, 5)
    elif p.kind == 'mfma':
        big = {4: 8, 8: 12}[p.passes]
        part = {4: 6, 8: 10}[p.passes]
        war = {4: 3, 8: 7}[p.passes]
        if c.kind == 'mfma':
            if p.defs & c.srcab:
                n = max(n, big)
            if p.defs & c.srcc:
                if not (p.defs == c.srcc and p.passes == c.passes):
                    n = max(n, part)
            elif p.defs & c.defs:
                n = max(n, big)
        elif c.kind == 'valu':
            if p.defs & (c.uses | c.defs):
                n = max(n, big)
            if p.srcc & c.defs:
                n = max(n, war)
        elif c.kind in ('vmem', 'ds'):
            if p.defs & (c.uses | c.defs):
                n = max(n, big)
            if p.srcc & c.defs:
                n = max(n, war)
    elif p.kind == 'vmem':
        if p.wide_store_data and (p.wide_store_data & c.defs):
            n = max(n, 2)
    elif p.kind == 'salu':
        if ('s', 124) in p.defs and (c.lds_dma or 'addtid' in c.op):
            n = max(n, 1)
    return n


WINDOW = 14


def deficit(hist, c):
    dist = 0
    need = 0
    for p in reversed(hist):
        if p.kind == 'none':
            continue
        r = required(p, c)
        if r > dist:
            need = max(need, r - dist)
        dist += p.states
        if dist >= WINDOW:
            break
    return need


class Emit:
    def __init__(self):
        self.ins = []
        self.uid = 0
        self.vm_issued = 0
        self.lg_issued = 0
        self.vm_done = 0
        self.lg_done = 0
        self.bgq = []
        self.bg_period = 0
        self.bg_acc = 0
        self.in_bg = False
        self.bg_log = None
        self.pending_free = 0
        self.bg_budget = None
        self.replay = False

    def __call__(self, s):
        for l in s.split('\n'):
            l = l.strip()
            if l:
                i = Ins(l)
                self.ins.append(i)
                if self.bg_period and not self.in_bg:
                    c = 0
                    if i.kind == 'mfma':
                        c = 16 if i.passes == 4 else 32
                        self.pending_free = 8 if i.passes == 4 else 24
                    elif i.kind in ('valu', 'ds', 'vmem'):
                        c = 8 if i.op.startswith(TRANS) else 4
                        f = min(self.pending_free, c)
                        self.pending_free -= f
                        c -= f
                    self.bg_acc += c
                    if i.kind in ('mfma', 'valu', 'ds') and self.bgq:
                        need = self.bgq[0][3] * self.bg_period / 100.0
                        if self.bg_acc >= need:
                            if self.bg_pop():
                                self.bg_acc -= need
                            else:
                                self.bg_acc = need

    def bg_push(self, fn, ready=None, key=None, cost=80):
        self.bgq.append((fn, ready, key, cost))

    def bg_pop(self, force=False):
        if not self.bgq:
            return False
        if not force and self.bg_budget is not None:
            if self.bg_budget <= 0:
                return False
        fn, ready, key, cost = self.bgq[0]
        if ready is not None and not ready():
            if force:
                raise Exception('bg item not ready: %r' % (key,))
            return False
        self.bgq.pop(0)
        if self.bg_budget is not None:
            self.bg_budget -= 1
        self.in_bg = True
        fn()
        self.in_bg = False
        if self.bg_log is not None:
            self.bg_log.append(fn)
        return True

    def bg_on(self, period, acc=0, budget=None):
        self.bg_budget = budget
        self.bg_period = period
        self.bg_acc = acc
        self.pending_free = 0

    def bg_off(self):
        self.bg_period = 0

    def bg_nobudget(self):
        self.bg_budget = None

    def bg_need(self, key):
        if any(x[2] == key for x in self.bgq):
            while True:
                k = self.bgq[0][2]
                self.bg_pop(force=True)
                if k == key:
                    break

    def bg_flush(self, n=10 ** 9):
        self.bg_budget = None
        while n > 0 and self.bg_pop():
            n -= 1

    def event(self, fn):
        per = self.bg_period
        self.bg_period = 0
        self.in_event = True
        fn()
        self.in_event = False
        self.bg_period = per
        if self.bg_log is not None:
            self.bg_log.append(fn)
            self.bg_events += 1

    def two_paths(self, cond_skip, path_a, alt_extra=None):
        la, lj = self.lab('L_alt'), self.lab('L_join')
        per = self.bg_period
        self.bg_period = 0
        cond_skip(la)
        self.bg_period = per
        v0, d0, l0, ld0 = self.vm_issued, self.vm_done, self.lg_issued, self.lg_done
        self.bg_log = []
        self.bg_events = 0
        path_a()
        log = self.bg_log
        self.bg_log = None
        self.bg_period = 0
        v1 = self.vm_issued
        assert v1 - v0 == len(log) - self.bg_events, 'counted foreground vm inside two_paths'
        dA = self.vm_done
        self('s_branch ' + lj)
        self(la + ':')
        self.vm_issued = v0
        self.vm_done = d0
        self.replay = True
        for fn in log:
            fn()
        self.replay = False
        d0 = min(dA, self.vm_done)
        assert self.vm_issued == v1
        if alt_extra is not None:
            alt_extra()
            assert self.vm_issued == v1
        self.vm_done = d0
        self.lg_issued, self.lg_done = l0, ld0
        self(lj + ':')
        self.bg_period = per

    def lab(self, base='L'):
        self.uid += 1
        return '%s_%d' % (base, self.uid)

    def vm(self, s, counted=True):
        self(s)
        if counted:
            self.vm_issued += 1
            return self.vm_issued - 1
        return None

    def lg(self, s, counted=True):
        self(s)
        if counted:
            self.lg_issued += 1
            return self.lg_issued - 1
        return None

    def wait(self, vm=None, lg=None):
        parts = []
        if vm is not None and vm >= self.vm_done:
            n = self.vm_issued - vm - 1
            parts.append('vmcnt(%d)' % min(n, 63))
            self.vm_done = max(vm + 1, self.vm_issued - min(n, 63))
        if lg is not None and lg >= self.lg_done:
            n = self.lg_issued - lg - 1
            parts.append('lgkmcnt(%d)' % min(n, 15))
            self.lg_done = max(self.lg_done, self.lg_issued - min(n, 15))
        if parts:
            self('s_waitcnt ' + ' '.join(parts))

    def wait_all(self, vm=True, lg=True):
        parts = []
        if vm:
            parts.append('vmcnt(0)')
            self.vm_done = self.vm_issued
        if lg:
            parts.append('lgkmcnt(0)')
            self.lg_done = self.lg_issued
        self('s_waitcnt ' + ' '.join(parts))

    def last_vm(self):
        return self.vm_issued - 1

    def last_lg(self):
        return self.lg_issued - 1

    def finalize(self):
        out = []
        nops = 0
        for c in self.ins:
            if c.kind != 'none':
                d = deficit(out[-40:], c)
                if d > 0:
                    out.append(Ins('s_nop %d' % (d - 1)))
                    nops += d
            out.append(c)
        changed = True
        while changed:
            changed = False
            labels = {x.label: i for i, x in enumerate(out) if x.is_label}
            for i, b in enumerate(out):
                if b.target is None or b.target not in labels:
                    continue
                hist = list(out[max(0, i - 40):i + 1])
                t = labels[b.target]
                worst = 0
                dist = 0
                for c in out[t:t + 40]:
                    if c.kind == 'none':
                        continue
                    dd = 0
                    need = 0
                    for p in reversed(hist):
                        if p.kind == 'none':
                            continue
                        r = required(p, c)
                        if r > dd + dist:
                            need = max(need, r - dd - dist)
                        dd += p.states
                        if dd + dist >= WINDOW:
                            break
                    worst = max(worst, need)
                    dist += c.states
                    if dist >= WINDOW or c.op in ('s_branch', 's_endpgm'):
                        break
                if worst > 0:
                    out.insert(i, Ins('s_nop %d' % (worst - 1)))
                    changed = True
                    break
        self.out = out
        return '\n'.join(('' if x.is_label else '    ') + x.text for x in out) + '\n'


def v(n, cnt=1):
    return 'v%d' % n if cnt == 1 else 'v[%d:%d]' % (n, n + cnt - 1)


def a(n, cnt=1):
    return 'a%d' % n if cnt == 1 else 'a[%d:%d]' % (n, n + cnt - 1)


def s(n, cnt=1):
    return 's%d' % n if cnt == 1 else 's[%d:%d]' % (n, n + cnt - 1)


def f2h(x):
    import struct
    return '0x%08x' % struct.unpack('<I', struct.pack('<f', x))[0]
```

```python
import sys, math
from emit import *

NAME = 'recurrent_scan__ssm_conv_h3__mixer_s_mlp__prompt_kernel'

H1 = 0x0000000
X1 = 0x0300000
HH = 0x0600000
W3P = 0x0D00000
W3H = 0x0F00000
W4P = 0x1000000
UU = 0x1300000
YT = 0x1900000
ST = 0x1C00000
FL = 0x1D00000
PROF = 0x1E00000
CH = 32768
OOB = 0x80000000
EPS = 1e-5
SPIN = 200000

S_X, S_K, S_V, S_W1, S_W2, S_W3, S_W4, S_OUT, S_WS, S_SK, S_SH, S_DBG, S_UN = 4, 8, 12, 16, 20, 24, 28, 32, 36, 40, 44, 48, 52
sC, sJ, sW, sCH, sCV = 56, 57, 58, 59, 60
sPW, sQW = 61, 62
sMASK = 63
sN0 = 64
sMQ = 66
sT = 70
sD = 90
sHALF = 91
sC1, sC2 = 92, 94
sEX = 96
sST = 98
sCNT = 100

vL, vR, vHQ, vLIN = 1, 2, 3, 4
vT = 5
vPROF = 23
vXR = 24
vX1P = 34
vM, vRS = 44, 45
vCM = 46
vCACC = 48
vXB = 80
vACC = 160
vE = 200


class Gen:
    def __init__(self, stop=99, prof=False, opts=None):
        self.e = Emit()
        self.stop = stop
        self.prof = prof
        self.nstamp = 0
        self.o = opts or {}

    def stamp(self, name=''):
        if not self.prof:
            return
        e = self.e
        e('%s s[%d:%d]' % ('s_memrealtime' if self.o.get('rt') else 's_memtime', sST, sST + 1))
        e('s_waitcnt lgkmcnt(0)')
        e.lg_done = e.lg_issued
        if e.replay:
            e('v_writelane_b32 v%d, s%d, %d ; stamp %s' % (vPROF, sST, self.names.index(name), name))
            return
        e('v_writelane_b32 v%d, s%d, %d ; stamp %s' % (vPROF, sST, self.nstamp, name))
        self.names = getattr(self, 'names', []) + [name]
        self.nstamp += 1

    def srd(self, d, off, size):
        e = self.e
        e('s_load_dwordx2 s[%d:%d], s[0:1], %d' % (d, d + 1, off))
        e('s_mov_b32 s%d, 0x%x' % (d + 2, size))
        e('s_mov_b32 s%d, 0x20000' % (d + 3))

    def poll(self, vaddr, nlanes, vtmp, soff='0', second=None):
        e = self.e
        lp = e.lab('L_poll')
        dn = e.lab('L_pdone')
        e('s_mov_b32 s%d, 0' % sCNT)
        if nlanes < 64:
            m = (1 << nlanes) - 1
            e('s_mov_b32 exec_lo, 0x%x' % (m & 0xffffffff))
            e('s_mov_b32 exec_hi, 0x%x' % (m >> 32))
        e(lp + ':')
        e.vm('buffer_load_dwordx2 v[%d:%d], v%d, s[%d:%d], %s offen sc1' % (vtmp, vtmp + 1, vaddr, S_WS, S_WS + 3, soff), counted=False)
        if second is not None:
            e.vm('buffer_load_dwordx2 v[%d:%d], v%d, s[%d:%d], %s offen sc1' % (vtmp + 2, vtmp + 3, second, S_WS, S_WS + 3, soff), counted=False)
        e('s_add_u32 s%d, s%d, 1' % (sCNT, sCNT))
        e('s_cmp_gt_u32 s%d, %d' % (sCNT, SPIN))
        e.wait_all(lg=False)
        e('s_cbranch_scc1 ' + dn)
        e('v_cmp_ne_u64 vcc, s[%d:%d], v[%d:%d]' % (sN0, sN0 + 1, vtmp, vtmp + 1))
        if second is not None:
            e('s_cbranch_vccnz ' + lp)
            e('v_cmp_ne_u64 vcc, s[%d:%d], v[%d:%d]' % (sN0, sN0 + 1, vtmp + 2, vtmp + 3))
        e('s_cbranch_vccnz ' + lp)
        e(dn + ':')
        if nlanes < 64:
            e('s_mov_b64 exec, -1')

    def flag(self, soff_reg, vtmp):
        e = self.e
        e('v_mov_b32 v%d, s%d' % (vtmp, sN0))
        e('v_mov_b32 v%d, s%d' % (vtmp + 1, sN0 + 1))
        e('v_mov_b32 v%d, 0' % (vtmp + 2))
        e('s_mov_b64 exec, 1')
        e.vm('buffer_store_dwordx2 v[%d:%d], v%d, s[%d:%d], s%d offen sc1' % (vtmp, vtmp + 1, vtmp + 2, S_WS, S_WS + 3, soff_reg), counted=False)
        e('s_mov_b64 exec, -1')

    def wg_flag(self, soff_expr_fn, vtmp):
        e = self.e
        sk = e.lab('L_nofl')
        e('s_cmp_lg_u32 s%d, 0' % sW)
        e('s_cbranch_scc1 ' + sk)
        soff_expr_fn(sT)
        self.flag(sT, vtmp)
        e(sk + ':')

    def unpack(self, dst, src):
        e = self.e
        e('v_lshlrev_b32 v%d, 16, v%d' % (dst, src))
        e('v_and_b32 v%d, s%d, v%d' % (dst + 1, sMASK, src))

    def normalize(self, regs, pair, tmp):
        e = self.e
        for g in range(0, len(regs), 4):
            grp = regs[g:g + 4]
            for i, d in enumerate(grp):
                self.unpack(tmp + 2 * i, d)
            for i, d in enumerate(grp):
                e('v_pk_fma_f32 v[%d:%d], v[%d:%d], v[%d:%d], v[%d:%d] op_sel:[0,0,1] op_sel_hi:[1,0,1]' % (
                    tmp + 2 * i, tmp + 2 * i + 1, tmp + 2 * i, tmp + 2 * i + 1, pair, pair + 1, pair, pair + 1))
            for i, d in enumerate(grp):
                e('v_cvt_pk_bf16_f32 v%d, v%d, v%d' % (d, tmp + 2 * i, tmp + 2 * i + 1))

    def gelu_pk(self, z, n, tmp):
        e = self.e
        P = lambda r: 'v[%d:%d]' % (r, r + 1)
        for i in range(0, n, 2):
            e('v_pk_mul_f32 %s, %s, %s' % (P(tmp + i), P(z + i), P(z + i)))
        for i in range(0, n, 2):
            e('v_pk_fma_f32 %s, %s, s[%d:%d], v[%d:%d] op_sel_hi:[1,0,0]' % (P(tmp + i), P(tmp + i), sC2, sC2 + 1, self.vC1, self.vC1 + 1))
        for i in range(0, n, 2):
            e('v_pk_mul_f32 %s, %s, %s' % (P(tmp + i), P(tmp + i), P(z + i)))
        for i in range(n):
            e('v_exp_f32 v%d, v%d' % (tmp + i, tmp + i))
        for i in range(0, n, 2):
            e('v_pk_add_f32 %s, %s, 1.0 op_sel_hi:[1,0]' % (P(tmp + i), P(tmp + i)))
        for i in range(n):
            e('v_rcp_f32 v%d, v%d' % (tmp + i, tmp + i))
        for i in range(0, n, 2):
            e('v_pk_mul_f32 %s, %s, %s' % (P(z + i), P(z + i), P(tmp + i)))

    def gelu_ops(self, z, t):
        return ['v_mul_f32 v%d, v%d, v%d' % (t, z, z),
                'v_fma_f32 v%d, v%d, s%d, v%d' % (t, t, sC2, self.vC1),
                'v_mul_f32 v%d, v%d, v%d' % (t, t, z),
                'v_exp_f32 v%d, v%d' % (t, t),
                'v_add_f32 v%d, 1.0, v%d' % (t, t),
                'v_rcp_f32 v%d, v%d' % (t, t),
                'v_mul_f32 v%d, v%d, v%d' % (z, z, t)]

    def finish(self):
        e = self.e
        if self.prof:
            e('s_waitcnt vmcnt(0)')
            e('s_memrealtime s[%d:%d]' % (sST, sST + 1))
            e('s_waitcnt lgkmcnt(0)')
            e('v_writelane_b32 v%d, s%d, 62' % (vPROF, sST))
            self.stamp('end')
            e('s_lshl_b32 s%d, s2, 2' % sT)
            e('s_add_u32 s%d, s%d, s%d' % (sT, sT, sW))
            e('s_lshl_b32 s%d, s%d, 8' % (sT, sT))
            e('s_add_u32 s%d, s%d, 0x%x' % (sT, sT, PROF))
            e('v_lshlrev_b32 v%d, 2, v%d' % (vT, vL))
            e('buffer_store_dword v%d, v%d, s[%d:%d], s%d offen' % (vPROF, vT, S_WS, S_WS + 3, sT))
        e('s_branch L_end')

    def splitk(self, ns, wreg, xreg, xtok, cinit=None, mid_barrier=None, xfree=None):
        parts = [[b + 4 * T for T in range(5)] for b in self.part]
        return self.splitk_gen(ns, wreg, xreg, xtok, cinit, xfree, mid_barrier or (lambda ph: None), parts)

    def pack20(self, src, dst):
        e = self.e
        for i in range(10):
            e('v_cvt_pk_bf16_f32 v%d, v%d, v%d' % (dst + i, src + 2 * i, src + 2 * i + 1))

    def store_tile_cm(self, src, base, vrow):
        e = self.e
        a0, a1 = vT + 4, vT + 5
        e('v_lshl_add_u32 v%d, v%d, 15, v%d' % (a0, vHQ, vrow))
        e('v_lshrrev_b32 v%d, 1, v%d' % (a1, vHQ))
        e('v_lshl_add_u32 v%d, v%d, 15, v%d' % (a1, a1, vrow))
        e('v_and_b32 v%d, 1, v%d' % (vT + 6, vHQ))
        e('v_lshl_add_u32 v%d, v%d, 3, v%d' % (a1, vT + 6, a1))
        e('s_mul_i32 s%d, s%d, %d' % (sT, sJ, 10 * CH))
        e('s_add_u32 s%d, s%d, 0x%x' % (sT, sT, base))
        e('s_add_u32 s%d, s%d, %d' % (sT + 1, sT, 4 * CH))
        e('s_add_u32 s%d, s%d, %d' % (sT + 2, sT, 8 * CH))
        e.vm('buffer_store_dwordx4 %s, v%d, s[%d:%d], s%d offen sc1' % (v(src, 4), a0, S_WS, S_WS + 3, sT))
        e.vm('buffer_store_dwordx4 %s, v%d, s[%d:%d], s%d offen sc1' % (v(src + 4, 4), a0, S_WS, S_WS + 3, sT + 1))
        return e.vm('buffer_store_dwordx2 %s, v%d, s[%d:%d], s%d offen sc1' % (v(src + 8, 2), a1, S_WS, S_WS + 3, sT + 2))

    def tr_reads(self, vtp, vts, off, dst, file='a', vt2=None, vt3=None):
        e = self.e
        R = (lambda n: 'a[%d:%d]' % (n, n + 1)) if file == 'a' else (lambda n: 'v[%d:%d]' % (n, n + 1))
        tok = None
        for T in range(5):
            for e2 in range(2):
                if T == 4:
                    ad, o = vts, 128
                elif T == 2 and vt2 is not None:
                    ad, o = vt2, 0
                elif T == 3 and vt3 is not None:
                    ad, o = vt3, 0
                else:
                    ad, o = vtp, 64 * (T >> 1) + 8 * (T & 1)
                tok = e.lg('ds_read_b64_tr_b16 %s, v%d offset:%d' % (R(dst + 4 * T + 2 * e2), ad, off + o + 2560 * e2))
        return tok

    def conv_addr(self, rho0):
        e = self.e
        vF, vG, vG0, vGl = vT + 8, vT + 9, vT + 10, vT + 11
        t0, t1 = vT + 12, vT + 7
        e('v_and_b32 v%d, 3, v%d' % (t0, vR))
        e('v_mul_u32_u24 v%d, 4160, v%d' % (vF, t0))
        e('v_lshrrev_b32 v%d, 2, v%d' % (t0, vR))
        e('v_add_u32 v%d, v%d, v%d' % (t0, t0, vHQ))
        e('v_lshl_add_u32 v%d, v%d, 4, v%d' % (vF, t0, vF))
        e('s_add_u32 s%d, s%d, %d' % (sT, sQW, 64 * rho0))
        e('v_add_u32 v%d, s%d, v%d' % (vF, sT, vF))
        e('v_and_b32 v%d, 1, v%d' % (t0, vR))
        e('v_mul_u32_u24 v%d, 4128, v%d' % (t0, t0))
        e('s_add_u32 s%d, s%d, 16640' % (sT, sQW))
        e('v_add_u32 v%d, s%d, v%d' % (t0, sT, t0))
        e('v_add_u32 v%d, 4096, v%d' % (vGl, t0))
        e('v_lshrrev_b32 v%d, 1, v%d' % (t1, vR))
        e('v_lshlrev_b32 v%d, 6, v%d' % (t1, t1))
        e('v_sub_u32 v%d, v%d, v%d' % (t0, t0, t1))
        e('v_lshl_add_u32 v%d, v%d, 4, v%d' % (t0, vHQ, t0))
        e('v_add_u32 v%d, %d, v%d' % (vG, 448 + 64 * rho0, t0))
        e('v_add_u32 v%d, 3584, v%d' % (vG0, vG))
        e('v_min_u32 v%d, v%d, v%d' % (vG0, vG0, vGl))
        return vF, vG, vG0, vGl

    def conv_part(self, rho0, nres, first, last, event=None):
        e = self.e
        vF, vG, vG0, vGl = self.conv_addr(rho0)
        F = lambda i: vXB + 4 * i
        G = lambda i: vXB + 32 + 4 * i

        def rdF(i, k):
            e('ds_read_b128 %s, v%d offset:%d' % (v(F(i), 4), vF, 512 * i + 64 * k))

        def rdG(i, k):
            if i == 0:
                e('ds_read_b128 %s, v%d' % (v(G(0), 4), vG0))
            else:
                e('ds_read_b128 %s, v%d offset:%d' % (v(G(i), 4), vG, 512 * (7 - i) + 64 * k))
        for i in range(7, -1, -1):
            rdF(i, 0)
            rdG(i, 0)
        if first:
            fd = vXB + 64
            t0, t1 = vT + 12, vT + 7
            e('v_lshrrev_b32 v%d, 2, v%d' % (t0, vR))
            e('v_add_u32 v%d, v%d, v%d' % (t0, t0, vHQ))
            e('v_mov_b32 v%d, s%d' % (t1, sD))
            e('v_cmp_eq_u32 vcc, 3, v%d' % t0)
            e('v_cndmask_b32 v%d, 0, v%d, vcc' % (t1, t1))
            e('v_and_b32 v%d, 3, v%d' % (t0, vR))
            for dd in range(4):
                e('v_cmp_eq_u32 vcc, %d, v%d' % (3 - dd, t0))
                e('v_cndmask_b32 v%d, 0, v%d, vcc' % (fd + dd, t1))
            e('s_waitcnt lgkmcnt(0)')
            for b in range(8):
                e('v_mfma_f32_16x16x32_bf16 %s, %s, %s, 0' % (v(vCACC + 4 * b, 4), v(fd, 4), v(G(b), 4)))
        order7 = [(3, 4), (4, 3), (2, 5), (5, 2), (1, 6), (6, 1), (0, 7), (7, 0)]
        for k in range(nres):
            more = k + 1 < nres
            if event is not None and event[0] == k:
                e.event(event[1])
            if self.o.get('finec'):
                self.stamp('res%d' % (rho0 + k))
            for n, (aa, bb) in enumerate(order7):
                e('s_waitcnt lgkmcnt(%d)' % (7 - n))
                e('v_mfma_f32_16x16x32_bf16 %s, %s, %s, %s' % (v(vCACC + 28, 4), v(F(aa), 4), v(G(bb), 4), v(vCACC + 28, 4)))
                if more and n == 0:
                    e('v_add_u32 v%d, %d, v%d' % (vG0, 3584 + 64 * (k + 1), vG))
                if more and n == 1:
                    e('v_min_u32 v%d, v%d, v%d' % (vG0, vG0, vGl))
            if more:
                rdF(7, k + 1)
                rdG(7, k + 1)
            for tau in range(6, -1, -1):
                for aa in range(tau + 1):
                    e('v_mfma_f32_16x16x32_bf16 %s, %s, %s, %s' % (v(vCACC + 4 * tau, 4), v(F(aa), 4), v(G(tau - aa), 4), v(vCACC + 4 * tau, 4)))
                if more:
                    rdF(tau, k + 1)
                    rdG(tau, k + 1)
        if last:
            t0, t1 = vT + 12, vT + 7
            per = e.bg_period
            e.bg_off()
            e('v_lshrrev_b32 v%d, 1, v%d' % (t0, vR))
            e('v_lshlrev_b32 v%d, 6, v%d' % (t0, t0))
            e('v_lshl_add_u32 v%d, v%d, 4, v%d' % (t0, vHQ, t0))
            e('v_and_b32 v%d, 1, v%d' % (t1, vR))
            e('v_lshl_add_u32 v%d, v%d, 3, v%d' % (t0, t1, t0))
            e('s_lshl_b32 s%d, s%d, 12' % (sT, sCH))
            e('s_add_u32 s%d, s%d, 0x%x' % (sT, sT, YT))
            for tau in range(7, -1, -1):
                b = vCACC + 4 * tau
                e('v_cvt_pk_bf16_f32 v%d, v%d, v%d' % (b, b, b + 1))
                e('v_cvt_pk_bf16_f32 v%d, v%d, v%d' % (b + 1, b + 2, b + 3))
                e.vm('buffer_store_dwordx2 %s, v%d, s[%d:%d], s%d offen offset:%d sc1' % (v(b, 2), t0, S_WS, S_WS + 3, sT, 512 * tau), counted=False)
            e.bg_period = per

    def conv_skip(self, lab):
        self.e('s_cmp_eq_u32 s%d, 0' % sCV)
        self.e('s_cbranch_scc1 ' + lab)

    def y_flag(self):
        e = self.e
        sk = e.lab('L_noyf')
        self.conv_skip(sk)
        e('s_mul_i32 s%d, s%d, 80' % (sT, sJ))
        e('s_sub_u32 s%d, s%d, s%d' % (sT, sCH, sT))
        e('s_lshr_b32 s%d, s%d, 3' % (sT + 1, sT))
        e('s_lshl_b32 s%d, s%d, 7' % (sT + 1, sT + 1))
        e('s_and_b32 s%d, s%d, 7' % (sT, sT))
        e('s_lshl_b32 s%d, s%d, 3' % (sT, sT))
        e('s_add_u32 s%d, s%d, s%d' % (sT, sT, sT + 1))
        e('s_lshl_b32 s%d, s%d, 11' % (sT + 1, sJ))
        e('s_add_u32 s%d, s%d, s%d' % (sT, sT, sT + 1))
        e('s_add_u32 s%d, s%d, 0x%x' % (sT, sT, FL + 0x8000))
        self.flag(sT, vT + 5)
        e(sk + ':')

    def poll_issue(self, vaddr, vtmp, soff='0'):
        return self.e.vm('buffer_load_dwordx2 v[%d:%d], v%d, s[%d:%d], %s offen sc1' % (vtmp, vtmp + 1, vaddr, S_WS, S_WS + 3, soff))

    def poll_check(self, tok, vaddr, vtmp, soff='0'):
        e = self.e
        per = e.bg_period
        e.bg_off()
        ok = e.lab('L_pok')
        e.wait(vm=tok)
        e('v_cmp_ne_u64 vcc, s[%d:%d], v[%d:%d]' % (sN0, sN0 + 1, vtmp, vtmp + 1))
        e('s_cbranch_vccz ' + ok)
        d = e.vm_done
        self.poll(vaddr, 64, vtmp, soff=soff)
        e.vm_done = d
        e(ok + ':')
        e.bg_period = per

    def row_flag_fn(self, ph):
        def f(d):
            e = self.e
            e('s_lshl_b32 s%d, s%d, 7' % (d, sC))
            e('s_lshl_b32 s%d, s%d, 3' % (d + 1, sJ))
            e('s_add_u32 s%d, s%d, s%d' % (d, d, d + 1))
            e('s_add_u32 s%d, s%d, 0x%x' % (d, d, FL + ph * 4096))
        return f

    def poll_row8(self, ph):
        e = self.e
        e('s_lshl_b32 s%d, s%d, 7' % (sT, sC))
        e('s_add_u32 s%d, s%d, 0x%x' % (sT, sT, FL + ph * 4096))
        e('v_lshlrev_b32 v%d, 3, v%d' % (vT + 4, vL))
        self.poll(vT + 4, 8, vT + 5, soff='s%d' % sT)

    def nobg(self, fn, *a, **k):
        per = self.e.bg_period
        self.e.bg_off()
        r = fn(*a, **k)
        self.e.bg_period = per
        return r

    def build(self):
        e = self.e
        o = self.o
        WS = 's[%d:%d]' % (S_WS, S_WS + 3)
        P = lambda r: 'v[%d:%d]' % (r, r + 1)
        sBG = 101
        NT = ' nt' if o.get('nt', 0) else ''
        NTU = ' nt' if o.get('ntu', 0) else ''
        CW, CKV, CF = o.get('c_w', 116), o.get('c_kv', 80), o.get('c_f', 75)
        sK1280 = sC2 + 1
        sOWN = sMQ + 3
        sRW = sC1
        sTCH = 3
        e('s_cmp_ge_u32 s2, 256')
        e('s_cbranch_scc1 L_end')
        if self.prof:
            e('s_memrealtime s[%d:%d]' % (sT, sT + 1))
        self.srd(S_X, 0, 2621440)
        self.srd(S_W1, 56, 819200)
        self.srd(S_WS, 104, 268435456)
        self.srd(S_DBG, 96, 256)
        self.srd(S_K, 8, 2621440)
        self.srd(S_V, 16, 2621440)
        self.srd(S_SH, 24, 5120)
        self.srd(S_SK, 32, 4096)
        self.srd(S_W2, 64, 819200)
        self.srd(S_W3, 72, 2211840)
        self.srd(S_W4, 80, 2211840)
        self.srd(S_OUT, 88, 2621440)
        e('s_load_dwordx2 s[%d:%d], s[0:1], 40' % (sT + 2, sT + 3))
        e('s_memrealtime s[%d:%d]' % (sN0, sN0 + 1))
        e('v_and_b32 v%d, 63, v0' % vL)
        e('v_lshrrev_b32 v%d, 6, v0' % vT)
        e('v_and_b32 v%d, 15, v%d' % (vR, vL))
        e('v_readfirstlane_b32 s%d, v%d' % (sW, vT))
        e('v_lshrrev_b32 v%d, 4, v%d' % (vHQ, vL))
        e('v_lshlrev_b32 v%d, 4, v%d' % (vLIN, vL))
        e('s_and_b32 s%d, s2, 7' % sC)
        e('s_lshl_b32 s%d, s%d, 2' % (sC, sC))
        e('s_lshr_b32 s%d, s2, 6' % sJ)
        e('s_add_u32 s%d, s%d, s%d' % (sC, sC, sJ))
        e('s_bfe_u32 s%d, s2, 0x30003' % sJ)
        e('s_mov_b32 s%d, 0xffff0000' % sMASK)
        e('s_mov_b32 s%d, 1280' % sK1280)
        e('s_and_b32 s%d, s%d, %d' % (sOWN, sJ, 3 if o.get('ownrot', 0) else 0))
        e('s_xor_b32 s%d, s%d, s%d' % (sOWN, sOWN, sW))
        for q in range(3):
            e('s_add_u32 s%d, s%d, %d' % (sMQ + q, sOWN, 1 + q))
            e('s_and_b32 s%d, s%d, 3' % (sMQ + q, sMQ + q))
        e('s_mul_i32 s%d, s%d, 15360' % (sPW, sOWN))
        e('s_mul_i32 s%d, s%d, 20480' % (sRW, sW))
        e('s_add_u32 s%d, s%d, 81920' % (sRW, sRW))
        e('s_mul_i32 s%d, s%d, 25600' % (sQW, sW))
        e('s_sub_u32 s%d, 138240, s%d' % (sQW, sQW))
        e('s_lshr_b32 s%d, s%d, 1' % (sT + 4, sC))
        e('s_mul_i32 s%d, s%d, 5' % (sT + 4, sT + 4))
        e('s_and_b32 s%d, s%d, 1' % (sT + 5, sC))
        e('s_mul_i32 s%d, s%d, 3' % (sT + 6, sT + 5))
        e('s_add_u32 s%d, s%d, s%d' % (sT + 4, sT + 4, sT + 6))
        e('s_add_u32 s%d, s%d, s%d' % (sT + 4, sT + 4, sW))
        e('s_mul_i32 s%d, s%d, 80' % (sCH, sJ))
        e('s_add_u32 s%d, s%d, s%d' % (sCH, sCH, sT + 4))
        e('s_add_u32 s%d, s%d, s%d' % (sT + 5, sT + 5, sW))
        e('s_cmp_lt_u32 s%d, 3' % (sT + 5))
        e('s_cselect_b32 s%d, 1, 0' % sCV)
        e('s_cselect_b32 s%d, s%d, 0' % (sCH, sCH))
        t0, t1 = vT + 2, vT + 3
        if self.prof:
            e('v_mov_b32 v%d, 0' % vPROF)
        e('s_waitcnt lgkmcnt(0)')
        if self.prof:
            e('v_writelane_b32 v%d, s%d, 63' % (vPROF, sT))
        self.stamp('start')
        nn = e.lab('L_nononce')
        e('s_or_b32 s%d, s2, s%d' % (sT + 6, sW))
        e('s_cmp_lg_u32 s%d, 0' % (sT + 6))
        e('s_cbranch_scc1 ' + nn)
        e('s_or_b32 s%d, s%d, 0x40000000' % (sN0 + 1, sN0 + 1))
        e('v_mov_b32 v%d, s%d' % (vT + 5, sN0))
        e('v_mov_b32 v%d, s%d' % (vT + 6, sN0 + 1))
        e('v_mov_b32 v%d, 0' % (vT + 4))
        e('s_mov_b64 exec, 1')
        e.vm('buffer_store_dwordx2 v[%d:%d], v%d, s[%d:%d], 0 offen sc1' % (vT + 5, vT + 6, vT + 4, S_DBG, S_DBG + 3), counted=False)
        e('s_mov_b64 exec, -1')
        e(nn + ':')
        if o.get('codepf', 1):
            nk = e.lab('L_nocpf')
            e('s_cmp_lg_u32 s%d, 3' % sW)
            e('s_cbranch_scc1 ' + nk)
            e('s_getpc_b64 s[%d:%d]' % (sT + 6, sT + 7))
            e('L_pc:')
            e('s_lshr_b32 s%d, s2, 3' % (sT + 5))
            e('s_mul_i32 s%d, s%d, %d' % (sT + 5, sT + 5, 12 * 128))
            e('v_lshl_add_u32 v%d, v%d, 7, s%d' % (vT + 4, vL, sT + 5))
            e('v_min_u32 v%d, L_end-L_pc, v%d' % (vT + 4, vT + 4))
            e('s_mov_b64 exec, 0xfff')
            e.vm('global_load_dword v%d, v%d, s[%d:%d]' % (vT + 15, vT + 4, sT + 6, sT + 7), counted=False)
            e('s_mov_b64 exec, -1')
            e(nk + ':')

        if o.get('touch', 1):
            e('s_lshl_b32 s%d, s%d, 2' % (sT + 5, sJ))
            e('s_add_u32 s%d, s%d, s%d' % (sT + 5, sT + 5, sW))
            e('s_mul_i32 s%d, s%d, 2560' % (sT + 5, sT + 5))
            e('s_mul_i32 s%d, s%d, %d' % (sT + 6, sC, 64 * 1280))
            e('s_add_u32 s%d, s%d, s%d' % (sT + 5, sT + 5, sT + 6))
            e('v_lshlrev_b32 v%d, 7, v%d' % (vT + 4, vL))
            e('s_mov_b64 exec, 0xfffff')
            e.vm('buffer_load_dword v%d, v%d, s[%d:%d], s%d offen' % (vT + 15, vT + 4, S_X, S_X + 3, sT + 5))
            e('s_lshr_b32 s%d, s2, 3' % sTCH)
            e('s_lshl_b32 s%d, s%d, 2' % (sTCH, sTCH))
            e('s_add_u32 s%d, s%d, s%d' % (sTCH, sTCH, sW))
            e('s_mul_i32 s%d, s%d, 6400' % (sTCH, sTCH))
            e('s_mov_b32 exec_lo, -1')
            e('s_mov_b32 exec_hi, 0x3ffff')
            e.vm('buffer_load_dword v%d, v%d, s[%d:%d], s%d offen' % (vT + 15, vT + 4, S_W1, S_W1 + 3, sTCH))
            e('s_mov_b64 exec, -1')

        vXS = vE + 40
        for n in range(5):
            e('v_add_u32 v%d, %d, v%d' % (t0, 64 * n, vL))
            e('v_mul_u32_u24 v%d, 820, v%d' % (t1, t0))
            e('v_lshrrev_b32 v%d, 16, v%d' % (t1, t1))
            e('v_mul_u32_u24 v%d, 80, v%d' % (vXS + n, t1))
            e('v_sub_u32 v%d, v%d, v%d' % (t0, t0, vXS + n))
            e('v_xor_b32 v%d, v%d, v%d' % (t0, t0, t1))
            e('v_lshlrev_b32 v%d, 4, v%d' % (t0, t0))
            e('v_mad_u32_u24 v%d, v%d, s%d, v%d' % (vXS + n, t1, sK1280, t0))
        xtok = {}
        sXo = sT + 17
        e('s_lshl_b32 s%d, s%d, 2' % (sXo, sC))
        e('s_add_u32 s%d, s%d, s%d' % (sXo, sXo, sOWN))
        e('s_mul_i32 s%d, s%d, 20480' % (sXo, sXo))
        e('s_mul_i32 s%d, s%d, 20480' % (sXo + 1, sOWN))

        def xdma(n):
            mm, k = divmod(n, 5)
            e('s_add_u32 s%d, s%d, %d' % (sBG, sXo, 5120 * mm))
            e('s_add_u32 m0, s%d, %d' % (sXo + 1, 1024 * n))
            if mm:
                e('v_xor_b32 v%d, %d, v%d' % (vT + 14, 64 * mm, vXS + k))
            xtok[n] = e.vm('buffer_load_dwordx4 v%d, s[%d:%d], s%d offen lds' % (vT + 14 if mm else vXS + k, S_X, S_X + 3, sBG))
        for n in range(20):
            e.bg_push(lambda n=n: xdma(n), key=('x', n))
        e.bg_flush(o.get('x_early', 0))
        self.stamp('x issued')
        e('s_lshr_b32 s%d, s%d, 1' % (sT + 4, sCH))
        e('s_lshl_b32 s%d, s%d, 2' % (sT + 4, sT + 4))
        e('s_load_dword s%d, s[%d:%d], s%d' % (sD, sT + 2, sT + 3, sT + 4))
        e('s_lshl_b32 s%d, s%d, 12' % (sT + 4, sCH))
        e('s_add_u32 s%d, s%d, s%d' % (S_SK, S_SK, sT + 4))
        e('s_addc_u32 s%d, s%d, 0' % (S_SK + 1, S_SK + 1))
        sB = sT + 4
        sDst = sT + 8
        sPitch, sSrc, sIs3 = sT + 13, sT + 14, sT + 15
        l4, lP = e.lab('L_u4'), e.lab('L_up')
        e('s_cmp_ge_u32 s%d, 20' % sC)
        e('s_cbranch_scc1 ' + l4)
        e('s_cmp_eq_u32 s%d, 3' % sW)
        e('s_cbranch_scc1 ' + l4)
        e('s_mov_b32 s%d, 3456' % sPitch)
        e('s_mul_i32 s%d, s%d, %d' % (sSrc, sC, 32 * 3456))
        e('s_mul_i32 s%d, s%d, 384' % (sT, sJ))
        e('s_mul_i32 s%d, s%d, 3' % (sT + 1, sJ))
        e('s_lshr_b32 s%d, s%d, 1' % (sT + 1, sT + 1))
        e('s_lshl_b32 s%d, s%d, 5' % (sT + 1, sT + 1))
        e('s_add_u32 s%d, s%d, 3072' % (sT + 1, sT + 1))
        e('s_mul_i32 s%d, s%d, %d' % (sT + 2, sJ, 4 * 61440))
        e('s_lshl_b32 s%d, s%d, 10' % (sT + 3, sC))
        e('s_add_u32 s%d, s%d, s%d' % (sT + 2, sT + 2, sT + 3))
        e('s_add_u32 s%d, s%d, 0x%x' % (sT + 2, sT + 2, W3P))
        e('s_mul_i32 s%d, s%d, 40960' % (sIs3, sJ))
        e('s_add_u32 s%d, s%d, s%d' % (sT + 3, sT + 3, sIs3))
        e('s_add_u32 s%d, s%d, 0x%x' % (sT + 3, sT + 3, W3H))
        lB, lC = e.lab('L_uB'), e.lab('L_uC')
        e('s_cmp_eq_u32 s%d, 1' % sW)
        e('s_cbranch_scc1 ' + lB)
        e('s_cmp_eq_u32 s%d, 2' % sW)
        e('s_cbranch_scc1 ' + lC)
        for i, oo in enumerate([0, 96, 128, 64]):
            e('s_add_u32 s%d, s%d, %d' % (sB + i, sT, oo))
        for i, oo in enumerate([0, 20480, 61440, 61440 + 20480, 40960]):
            e('s_add_u32 s%d, s%d, %d' % (sDst + i, sT + 2, oo))
        e('s_mov_b32 s%d, 2' % sIs3)
        e('s_branch ' + lP)
        e(lB + ':')
        for i, oo in enumerate([192, 160, 256]):
            e('s_add_u32 s%d, s%d, %d' % (sB + i, sT, oo))
        e('s_mov_b32 s%d, s%d' % (sB + 3, sT + 1))
        for i, oo in enumerate([2 * 61440, 2 * 61440 + 20480, 61440 + 40960, 2 * 61440 + 40960]):
            e('s_add_u32 s%d, s%d, %d' % (sDst + i, sT + 2, oo))
        e('s_mov_b32 s%d, s%d' % (sDst + 4, sT + 3))
        e('s_mov_b32 s%d, 3' % sIs3)
        e('s_branch ' + lP)
        e(lC + ':')
        for i, oo in enumerate([288, 352]):
            e('s_add_u32 s%d, s%d, %d' % (sB + i, sT, oo))
        e('s_add_u32 s%d, s%d, 32' % (sB + 2, sT + 1))
        e('s_mov_b32 s%d, 0x%x' % (sB + 3, OOB))
        for i, oo in enumerate([3 * 61440, 3 * 61440 + 20480, 3 * 61440 + 40960]):
            e('s_add_u32 s%d, s%d, %d' % (sDst + i, sT + 2, oo))
        e('s_add_u32 s%d, s%d, 20480' % (sDst + 3, sT + 3))
        e('s_mov_b32 s%d, 0x%x' % (sDst + 4, OOB))
        e('s_mov_b32 s%d, 3' % sIs3)
        e('s_branch ' + lP)
        e(l4 + ':')
        e('s_sub_u32 s%d, s%d, 20' % (sT, sC))
        e('s_lshl_b32 s%d, s%d, 2' % (sT, sT))
        e('s_add_u32 s%d, s%d, s%d' % (sT, sT, sW))
        e('s_add_u32 s%d, s%d, 20' % (sT, sT))
        e('s_cmp_lt_u32 s%d, 20' % sC)
        e('s_cselect_b32 s%d, s%d, s%d' % (sT, sC, sT))
        e('s_mov_b32 s%d, 1280' % sPitch)
        e('s_mul_i32 s%d, s%d, %d' % (sSrc, sT, 32 * 1280))
        e('s_mul_i32 s%d, s%d, 160' % (sT + 1, sJ))
        for i, oo in enumerate([0, 64, 96, 128]):
            e('s_add_u32 s%d, s%d, %d' % (sB + i, sT + 1, oo))
        e('s_mul_i32 s%d, s%d, 286720' % (sT + 2, sJ))
        e('s_mul_i32 s%d, s%d, 5120' % (sT + 3, sT))
        e('s_add_u32 s%d, s%d, s%d' % (sT + 2, sT + 2, sT + 3))
        e('s_add_u32 s%d, s%d, 0x%x' % (sT + 2, sT + 2, W4P))
        e('s_cmp_lt_u32 s%d, 54' % sT)
        e('s_cselect_b32 s%d, s%d, 0x%x' % (sT + 2, sT + 2, OOB))
        e('s_cselect_b32 s%d, s%d, 0x%x' % (sSrc, sSrc, OOB))
        for i in range(5):
            e('s_add_u32 s%d, s%d, %d' % (sDst + i, sT + 2, 1024 * i))
        e('s_mov_b32 s%d, 0' % sIs3)
        e(lP + ':')
        e('s_cmp_lg_u32 s%d, 0' % sIs3)
        e('s_cselect_b32 s%d, s%d, s%d' % (S_UN, S_W3, S_W4))
        e('s_cselect_b32 s%d, s%d, s%d' % (S_UN + 1, S_W3 + 1, S_W4 + 1))
        e('s_mov_b32 s%d, 2211840' % (S_UN + 2))
        e('s_mov_b32 s%d, 0x20000' % (S_UN + 3))
        vW, vUA = vE, vE + 5
        vTP, vTS, vTPq, vTSq, vXFp, vXFq = vE + 10, vE + 11, vE + 12, vE + 13, vE + 14, vE + 15
        sWo = sT + 16
        e('s_mul_i32 s%d, s%d, %d' % (sWo, sW, 160 * 1280))
        e('s_mul_i32 s%d, s%d, 160' % (sT, sJ))
        e('s_add_u32 s%d, s%d, s%d' % (sWo, sWo, sT))
        vKP, vU = vE + 24, vE + 29
        for n in range(5):
            e('v_add_u32 v%d, %d, v%d' % (t0, 64 * n, vL))
            e('v_mul_u32_u24 v%d, 6554, v%d' % (t1, t0))
            e('v_lshrrev_b32 v%d, 16, v%d' % (t1, t1))
            e('v_mul_u32_u24 v%d, 10, v%d' % (vU + n, t1))
            e('v_sub_u32 v%d, v%d, v%d' % (vU + n, t0, vU + n))
            e('v_bfe_u32 v%d, v%d, 2, 2' % (t0, t1))
            e('v_lshlrev_b32 v%d, 3, v%d' % (t0, t0))
            e('v_and_b32 v%d, 3, v%d' % (vKP + n, t1))
            e('v_add_u32 v%d, v%d, v%d' % (vKP + n, vKP + n, t0))
            e('v_lshrrev_b32 v%d, 4, v%d' % (t1, t1))
            e('v_lshl_add_u32 v%d, v%d, 2, v%d' % (vKP + n, t1, vKP + n))
            e('v_mul_u32_u24 v%d, 1280, v%d' % (vW + n, vKP + n))
            e('v_lshl_add_u32 v%d, v%d, 4, v%d' % (vW + n, vU + n, vW + n))
        wtok = {}

        def wdma(srd, s_, slot_, n):
            b, off = (sRW, 5120 * s_) if s_ < 4 else (sPW, 0)
            e('s_add_u32 s%d, s%d, %d' % (sBG, sWo, s_ * 32 * 1280))
            e('s_add_u32 m0, s%d, %d' % (b, off + 1024 * n))
            wtok[srd, s_, n] = e.vm('buffer_load_dwordx4 v%d, s[%d:%d], s%d offen lds' % (vW + n, srd, srd + 3, sBG))
        for s_ in range(4):
            for n in range(5):
                if (s_, n) != (3, 4):
                    e.bg_push(lambda s_=s_, n=n: wdma(S_W1, s_, 4 + s_, n), key=('w1', s_, n), cost=CW)
        for n in range(5):
            t2 = vT + 4
            u = vU + n
            e('v_and_b32 v%d, 1, v%d' % (t1, u))
            e('v_lshlrev_b32 v%d, 4, v%d' % (t1, t1))
            e('v_lshlrev_b32 v%d, 4, v%d' % (t0, u))
            e('v_add_u32 v%d, s%d, v%d' % (t0, sB, t0))
            for i, lim in ((1, 4), (2, 6), (3, 8)):
                e('v_add_u32 v%d, s%d, v%d' % (t2, sB + i, t1))
                e('v_cmp_le_u32 vcc, %d, v%d' % (lim, u))
                e('v_cndmask_b32 v%d, v%d, v%d, vcc' % (t0, t0, t2))
            e('v_mad_u32_u24 v%d, v%d, s%d, v%d' % (vUA + n, vKP + n, sPitch, t0))
        self.stamp('setup')
        e.bg_need(('x', 19))
        self.stamp('x all issued')
        e.bg_on(o.get('per0', 100))
        e('v_lshrrev_b32 v%d, 2, v%d' % (t0, vL))
        e('v_mul_u32_u24 v%d, 160, v%d' % (t0, t0))
        e('v_and_b32 v%d, 3, v%d' % (t1, vL))
        e('v_lshl_add_u32 v%d, v%d, 4, v%d' % (vTP, t1, t0))
        e('v_lshl_add_u32 v%d, v%d, 3, v%d' % (vTS, t1, t0))
        e('v_add_u32 v%d, s%d, v%d' % (vTPq, sRW, vTP))
        e('v_add_u32 v%d, s%d, v%d' % (vTSq, sRW, vTS))
        e('v_add_u32 v%d, s%d, v%d' % (vTP, sPW, vTP))
        e('v_add_u32 v%d, s%d, v%d' % (vTS, sPW, vTS))
        vXO, vXQ = vE + 45, vE + 49
        e('v_mul_u32_u24 v%d, 1280, v%d' % (t1, vR))
        for k in range(4):
            e('v_add_u32 v%d, %d, v%d' % (t0, 4 * k, vHQ))
            e('v_xor_b32 v%d, v%d, v%d' % (t0, t0, vR))
            e('v_lshl_add_u32 v%d, v%d, 4, v%d' % (vXO + k, t0, t1))
            e('v_add_u32 v%d, s%d, v%d' % (vXO + k, sXo + 1, vXO + k))
        for s_ in range(5):
            e('s_mul_i32 s%d, s%d, 20' % (sT, sW))
            e('s_add_u32 s%d, s%d, %d' % (sT, sT, 4 * s_))
            e('v_add_u32 v%d, s%d, v%d' % (t0, sT, vHQ))
            e('v_xor_b32 v%d, v%d, v%d' % (t0, t0, vR))
            e('v_lshl_add_u32 v%d, v%d, 4, v%d' % (vXQ + s_, t0, t1))
        c1 = -2.0 * math.log2(math.e) * math.sqrt(2.0 / math.pi)
        self.vC1 = vT + 17
        e('v_mov_b32 v%d, %s' % (self.vC1, f2h(c1)))
        e('s_mov_b32 s%d, %s' % (sC2, f2h(c1 * 0.044715)))
        e('v_lshlrev_b32 v%d, 4, v%d' % (vCM, vR))
        e('v_lshl_add_u32 v%d, v%d, 15, v%d' % (vCM, vHQ, vCM))
        e('s_lshl_b32 s%d, s%d, 10' % (sT, sC))
        e('v_add_u32 v%d, s%d, v%d' % (vCM, sT, vCM))
        vOX = vE + 16
        e('s_mul_i32 s%d, s%d, 10' % (sT + 3, sJ))
        e('v_add_u32 v%d, s%d, v%d' % (t1, sXo + 1, t1))
        for i in range(3):
            if i < 2:
                e('v_add3_u32 v%d, v%d, %d, s%d' % (t0, vHQ, 4 * i, sT + 3))
            else:
                e('v_lshrrev_b32 v%d, 1, v%d' % (t0, vHQ))
                e('v_add3_u32 v%d, v%d, 8, s%d' % (t0, t0, sT + 3))
            e('v_xor_b32 v%d, v%d, v%d' % (t0, t0, vR))
            e('v_lshl_add_u32 v%d, v%d, 4, v%d' % (vOX + i, t0, t1))
        e('v_and_b32 v%d, 1, v%d' % (t0, vHQ))
        e('v_lshl_add_u32 v%d, v%d, 3, v%d' % (vOX + 2, t0, vOX + 2))
        vKA = vT + 16
        vUW = vE + 19
        vK, vSH = vCACC, vCACC + 24
        vVr = [vX1P + 2 * i for i in range(5)] + [240 + 2 * i for i in range(4)]
        vSA_ = vT + 15
        e('v_cmp_le_u32 vcc, 20, v%d' % vL)
        e('v_cndmask_b32 v%d, 0, 1, vcc' % t0)
        e('v_mul_u32_u24 v%d, 20, v%d' % (t1, t0))
        e('v_sub_u32 v%d, v%d, v%d' % (t1, vL, t1))
        t2, t3 = vT + 5, vT + 6
        e('v_cmp_le_u32 vcc, 10, v%d' % t1)
        e('v_cndmask_b32 v%d, 0, 1, vcc' % t2)
        e('v_mul_u32_u24 v%d, 10, v%d' % (t3, t2))
        e('v_sub_u32 v%d, v%d, v%d' % (t3, t1, t3))
        e('v_mul_u32_u24 v%d, 15360, v%d' % (vUW, t2))
        e('v_lshl_add_u32 v%d, v%d, 9, v%d' % (vUW, t3, vUW))
        e('s_lshl_b32 s%d, s%d, 1' % (sT, sW))
        e('s_sub_u32 s%d, 7, s%d' % (sT, sT))
        e('v_sub_u32 v%d, s%d, v%d' % (t2, sT, t0))
        e('v_and_b32 v%d, 7, v%d' % (t3, t3))
        e('v_xor_b32 v%d, v%d, v%d' % (t2, t2, t3))
        e('v_lshl_add_u32 v%d, v%d, 4, v%d' % (vUW, t2, vUW))
        e('v_add_u32 v%d, 5120, v%d' % (vUW, vUW))
        e('s_lshl_b32 s%d, s%d, 6' % (sT, sC))
        e('s_lshl_b32 s%d, s%d, 4' % (sT + 1, sW))
        e('s_add_u32 s%d, s%d, s%d' % (sT, sT, sT + 1))
        e('v_lshl_add_u32 v%d, v%d, 3, s%d' % (t0, t0, sT))
        e('s_mul_i32 s%d, s%d, 80' % (sT + 1, sJ))
        e('v_lshl_add_u32 v%d, v%d, 2, s%d' % (t1, t1, sT + 1))
        e('v_subrev_u32 v%d, 4, v%d' % (t0, t0))
        e('v_mul_i32_i24 v%d, 1280, v%d' % (t0, t0))
        e('v_lshl_add_u32 v%d, v%d, 1, v%d' % (t0, t1, t0))
        e('v_lshlrev_b32 v%d, 3, v%d' % (t1, t1))
        e('v_mov_b32 v%d, 0x%x' % (t2, OOB))
        e('v_cmp_gt_u32 vcc, 40, v%d' % vL)
        e('v_cndmask_b32 v%d, v%d, v%d, vcc' % (vKA, t2, t0))
        e('v_cndmask_b32 v%d, v%d, v%d, vcc' % (vUW + 0 if False else vT + 12, t2, t1))
        vSHA = vT + 12
        self.stamp('setupB')

        vOne = vE + 20
        vSA = vE + 24
        for i in range(4):
            e('v_mov_b32 v%d, 0x3f803f80' % (vOne + i))
        sM = sT
        for i, mk in enumerate((0x22222222, 0x44444444, 0x88888888)):
            e('s_mov_b32 s%d, 0x%x' % (sM + 2 * i, mk))
            e('s_mov_b32 s%d, 0x%x' % (sM + 2 * i + 1, mk))
        e('s_mov_b32 s%d, %s' % (sT + 6, f2h(1.0 / 640)))
        e('s_mov_b32 s%d, %s' % (sT + 7, f2h(EPS)))
        e.wait(vm=xtok[19])
        e.bg_on(o.get('per0b', 100))
        xr = {}
        for s_ in range(20):
            xr[s_] = e.lg('ds_read_b128 %s, v%d offset:%d' % (v(vXB + 4 * s_, 4), vXO + (s_ & 3), 256 * (s_ >> 2)))
        sa, ga = v(vSA, 4), v(vSA + 4, 4)
        for s_ in range(20):
            e.wait(lg=xr[s_])
            x = v(vXB + 4 * s_, 4)
            e('v_mfma_f32_16x16x32_bf16 %s, %s, %s, %s' % (sa, v(vOne, 4), x, '0' if s_ == 0 else sa))
            e('v_mfma_f32_16x16x32_bf16 %s, %s, %s, %s' % (ga, x, x, '0' if s_ == 0 else ga))
        self.stamp('x landed')
        e.bg_off()
        vSW = vT + 4
        e('s_add_u32 s%d, s%d, %d' % (sBG, sRW, 19456))
        e('v_lshl_add_u32 v%d, v%d, 4, s%d' % (vSW, vR, sBG))
        g = vSA + 4
        b = vSA
        for i in range(3):
            e('v_cndmask_b32 v%d, v%d, v%d, s[%d:%d]' % (g, g, g + 1 + i, sM + 2 * i, sM + 2 * i + 1))
        r4 = vSA + 8
        e('v_mul_f32 v%d, s%d, v%d' % (b, sT + 6, b))
        e('v_mul_f32 v%d, s%d, v%d' % (g, sT + 6, g))
        e('v_fma_f32 v%d, -v%d, v%d, v%d' % (g, b, b, g))
        e('v_max_f32 v%d, 0, v%d' % (g, g))
        e('v_add_f32 v%d, s%d, v%d' % (r4 + 2, sT + 7, g))
        e('v_rsq_f32 v%d, v%d' % (r4 + 2, r4 + 2))
        e('v_mul_f32 v%d, v%d, v%d' % (r4, r4 + 2, r4 + 2))
        e('v_fma_f32 v%d, v%d, v%d, s%d' % (r4, r4, g, sT + 7))
        e('v_rsq_f32 v%d, v%d' % (r4, r4))
        e('v_mul_f32 v%d, -v%d, v%d' % (r4 + 3, b, r4 + 2))
        e('v_mul_f32 v%d, v%d, v%d' % (r4, r4, r4 + 2))
        e('v_mul_f32 v%d, -v%d, v%d' % (r4 + 1, b, r4))
        e('s_mov_b32 exec_lo, 0x00f0000f')
        e('s_mov_b32 exec_hi, 0xf0000f00')
        e.lg('ds_write_b128 v%d, %s' % (vSW, v(r4, 4)))
        e('s_mov_b64 exec, -1')
        vPR = vE + 20
        vSR = vT + 5
        for q in range(4):
            e('s_xor_b32 s%d, s%d, s%d' % (sT, sMQ + q, sOWN))
            e('s_xor_b32 s%d, s%d, s%d' % (sT, sT, sW))
            e('s_mul_i32 s%d, s%d, 20480' % (sT, sT))
            e('s_add_u32 s%d, s%d, %d' % (sT, sT, 81920 + 19456))
            e('v_lshl_add_u32 v%d, v%d, 4, s%d' % (vSR + q, vR, sT))
            e('s_mul_i32 s%d, s%d, 20480' % (sT + 1 + q, sMQ + q))
        e.wait(lg=e.last_lg())
        e('s_barrier')
        for q in range(4):
            e.lg('ds_read_b64 %s, v%d' % (v(vPR + 2 * q, 2), vSR + q))
        e.lg('ds_read_b64 v[44:45], v%d offset:8' % vSW)
        for q in range(4):
            for s_ in range(5):
                e('v_add_u32 v%d, s%d, v%d' % (vT + 9 + (s_ & 1), sT + 1 + q, vXQ + s_))
                e.lg('ds_read_b128 %s, v%d' % (v(vXB + 20 * q + 4 * s_, 4), vT + 9 + (s_ & 1)))
        e.lg('ds_read_b128 %s, v%d' % (v(vXR, 4), vOX))
        e.lg('ds_read_b128 %s, v%d' % (v(vXR + 4, 4), vOX + 1))
        e.lg('ds_read_b64 %s, v%d' % (v(vXR + 8, 2), vOX + 2))
        e.wait(lg=e.last_lg())
        e('s_barrier')
        self.stamp('stats')
        e.bg_push(lambda: wdma(S_W1, 3, 7, 4), key=('w1', 3, 4), cost=CW)
        for n in range(5):
            e.bg_push(lambda n=n: wdma(S_W1, 4, 0, n), key=('w1', 4, n), cost=CW)
        tk = {}
        vNo = vT + 13

        def ld_nonce():
            e('v_mov_b32 v%d, 0' % vNo)
            tk['nonce'] = e.vm('buffer_load_dwordx2 v[%d:%d], v%d, s[%d:%d], 0 offen sc1' % (vNo, vNo + 1, vNo, S_DBG, S_DBG + 3))
        e.bg_push(ld_nonce, key='nonce', cost=20)

        def touch_w2():
            e('v_lshlrev_b32 v%d, 7, v%d' % (vT + 15, vL))
            e('s_mov_b32 exec_hi, 0x3ffff')
            e.vm('buffer_load_dword v%d, v%d, s[%d:%d], s%d offen' % (vT + 15, vT + 15, S_W2, S_W2 + 3, sTCH))
            e('s_mov_b32 exec_hi, -1')
        if o.get('touch', 1):
            e.bg_push(touch_w2, cost=o.get('c_touch', 300))

        def ld_unit(n):
            e('s_mul_i32 s%d, s%d, 5120' % (sBG, sW))
            e('s_add_u32 m0, s%d, %d' % (sBG, 61440 + 1024 * n))
            tk['unit'] = e.vm(('buffer_load_dwordx4 v%d, s[%d:%d], s%d offen' + NTU + ' lds') % (vUA + n, S_UN, S_UN + 3, sSrc))
        def ld_sh(i):
            e.vm('buffer_load_dwordx4 %s, v%d, s[%d:%d], 0 offen offset:%d' % (v(vSH + 4 * i, 4), vSHA, S_SH, S_SH + 3, 16 * i))

        def ld_k(i):
            if i > 0:
                e('v_add_u32 v%d, 1280, v%d' % (vKA, vKA))
            tk['kv'] = e.vm(('buffer_load_dwordx2 %s, v%d, s[%d:%d], 0 offen' + NT) % (v(vK + 2 * i, 2), vKA, S_K, S_K + 3))

        def ld_v(i):
            tk['kv'] = e.vm(('buffer_load_dwordx2 %s, v%d, s[%d:%d], 0 offen' + NT) % (v(vVr[i], 2), vKA, S_V, S_V + 3))
        e.bg_on(o.get('per1', 100))
        for i in range(2):
            e.bg_push(lambda i=i: ld_sh(i), cost=60)
        for i in range(12):
            e.bg_push(lambda i=i: ld_k(i), key=('k', i), cost=CKV)
            if i >= 3:
                e.bg_push(lambda i=i: ld_v(i - 3), key=('v', i - 3), cost=CKV)
        for n in range(5):
            e.bg_push(lambda n=n: ld_unit(n), key=('unit', n), cost=o.get('c_unit', 200))

        def w_tr(srd, s_, base):
            e.bg_need(('w1' if srd == S_W1 else 'w2', s_, 4))
            e.wait(vm=wtok[srd, s_, 4])
            if s_ < 4:
                return self.tr_reads(vTPq, vTSq, 5120 * s_, base + 20 * s_)
            return self.tr_reads(vTP, vTS, 0, base + 20 * s_)
        for q in range(4):
            self.normalize([vXB + 20 * q + i for i in range(20)], vPR + 2 * q, vSA + 8)
            if q >= 1:
                lt = w_tr(S_W1, q - 1, 0)
        self.stamp('normalized')
        for s_ in (3, 4):
            lt = w_tr(S_W1, s_, 0)
        e.wait(lg=lt)
        self.stamp('w1 frags')
        for s_ in range(4):
            for n in range(5):
                e.bg_push(lambda s_=s_, n=n: wdma(S_W2, s_, 4 + s_, n), key=('w2', s_, n), cost=CW)

        self.part = [vXB, vXB + 20, vXB + 40]
        e.bg_on(o.get('per2', 100))
        acc = self.splitk(5, lambda s_, T: a(20 * s_ + 4 * T, 4), lambda q, s_: vXB + 20 * q + 4 * s_, lambda q, s_: None)
        self.stamp('P1 mfma')
        if o.get('hold1', 1):
            e.bg_off()
        self.gelu_pk(acc, 20, vXB + 20)
        self.pack20(acc, vXB)
        e.bg_off()
        vRow = vT + 7
        pshift = o.get('pshift', 0)
        e('s_lshl_b32 s%d, s%d, 6' % (sT + 6, sC))
        e('s_lshl_b32 s%d, s%d, 4' % (sT + 7, sOWN))
        e('s_add_u32 s%d, s%d, s%d' % (sT + 6, sT + 6, sT + 7))
        if pshift:
            e('s_lshr_b32 s%d, s%d, 1' % (sT + 4, sJ))
            e('s_lshr_b32 s%d, s%d, 1' % (sT + 5, sT + 4))
            e('s_add_u32 s%d, s%d, 1' % (sT + 5, sT + 5))
            e('s_sub_u32 s%d, 0, s%d' % (sT + 7, sT + 5))
            e('s_bitcmp1_b32 s%d, 0' % (sT + 4))
            e('s_cselect_b32 s%d, s%d, s%d' % (sT + 5, sT + 7, sT + 5))
            e('s_add_u32 s%d, s%d, s%d' % (sT + 5, sT + 5, sT + 6))
            e('v_add_u32 v%d, s%d, v%d' % (vRow, sT + 5, vR))
            e('v_cmp_gt_u32 vcc, 2048, v%d' % vRow)
            e('v_lshlrev_b32 v%d, 4, v%d' % (vRow, vRow))
            e('v_mov_b32 v%d, 0x%x' % (vT + 8, OOB))
            e('v_cndmask_b32 v%d, v%d, v%d, vcc' % (vRow, vT + 8, vRow))
        else:
            e('v_add_lshl_u32 v%d, s%d, v%d, 4' % (vRow, sT + 6, vR))
        htok = self.store_tile_cm(vXB, H1, vRow)
        self.stamp('h stored')
        e.bg_need('nonce')
        lp, dn = e.lab('L_np'), e.lab('L_nd')
        e.wait(vm=tk['nonce'])
        e('v_readfirstlane_b32 s%d, v%d' % (sN0, vNo))
        e('v_readfirstlane_b32 s%d, v%d' % (sN0 + 1, vNo + 1))
        e('s_cmp_lg_u32 s%d, 0' % (sN0 + 1))
        e('s_cbranch_scc1 ' + dn)
        e('v_mov_b32 v%d, 0' % (vT + 4))
        e('s_mov_b32 s%d, 0' % sCNT)
        e(lp + ':')
        e.vm('buffer_load_dwordx2 v[%d:%d], v%d, s[%d:%d], 0 offen sc1' % (vNo, vNo + 1, vT + 4, S_DBG, S_DBG + 3), counted=False)
        e('s_add_u32 s%d, s%d, 1' % (sCNT, sCNT))
        e('s_cmp_gt_u32 s%d, %d' % (sCNT, SPIN))
        e('s_waitcnt vmcnt(0)')
        e('v_readfirstlane_b32 s%d, v%d' % (sN0, vNo))
        e('v_readfirstlane_b32 s%d, v%d' % (sN0 + 1, vNo + 1))
        e('s_cbranch_scc1 ' + dn)
        e('s_cmp_eq_u32 s%d, 0' % (sN0 + 1))
        e('s_cbranch_scc1 ' + lp)
        e(dn + ':')

        e.bg_need(('v', 8))
        vSK, vKF, vO, vTv, vPk = vXB + 12, vXB + 28, vXB + 36, vXB + 54, vXB + 56
        e.wait(vm=tk['kv'])
        e.bg_on(o.get('per3', 100))
        for ch in range(4):
            for tp in range(4):
                src = vSH + 2 * ch + (tp >> 1)
                if tp & 1:
                    e('v_and_b32 v%d, s%d, v%d' % (vSK + 4 * tp + ch, sMASK, src))
                else:
                    e('v_lshlrev_b32 v%d, 16, v%d' % (vSK + 4 * tp + ch, src))

        def c1_pair(cp):
            outr = [vO + 2 * i for i in range(9)]
            kf = lambda row: vKF + 2 * (row & 3)
            for row in range(12):
                self.unpack(kf(row), vK + 2 * row + cp)
                if row >= 3:
                    oo = outr[row - 3]
                    self.unpack(vTv, vVr[row - 3] + cp)
                    e('v_pk_mul_f32 %s, %s, %s' % (P(oo), P(kf(row)), P(vSK + 2 * cp)))
                    for tp in range(1, 4):
                        e('v_pk_fma_f32 %s, %s, %s, %s' % (P(oo), P(kf(row - tp)), P(vSK + 4 * tp + 2 * cp), P(oo)))
                    e('v_pk_mul_f32 %s, %s, %s' % (P(oo), P(oo), P(vTv)))
            for cc in range(2):
                for par in (1, 0):
                    pk = vPk + 16 * cp + 8 * cc + 4 * par
                    top = 8 if par else 7
                    for d in range(4):
                        e('v_cvt_pk_bf16_f32 v%d, v%d, v%d' % (pk + d, outr[top - 2 * d] + cc, outr[top - 2 * d - 1] + cc))
        c1_pair(0)
        e.bg_off()
        e.wait(vm=htok)
        e('s_barrier')
        self.wg_flag(self.row_flag_fn(0), vT + 5)
        self.stamp('h flagged')
        if self.stop <= 1:
            return self.finish()
        for n in range(5):
            e.bg_push(lambda n=n: wdma(S_W2, 4, 0, n), key=('w2', 4, n), cost=CW)
        e.bg_on(o.get('per3', 100))
        c1_pair(1)
        e.bg_off()
        e('s_mov_b32 exec_lo, -1')
        e('s_mov_b32 exec_hi, 0xff')
        for cp in range(2):
            for cc in range(2):
                for par in (1, 0):
                    e.lg('ds_write_b128 v%d, %s offset:%d' % (vUW, v(vPk + 16 * cp + 8 * cc + 4 * par, 4), 30720 * par + 128 * (2 * cp + cc)))
        e('s_mov_b64 exec, -1')
        e.bg_flush()
        vUF = vXB + 40
        vT2, vT3 = vT + 2, vT + 3
        e('s_cmp_eq_u32 s%d, 3' % sIs3)
        e('s_cselect_b32 s%d, -1, 0' % (sT + 2))
        e('s_cselect_b32 s%d, -1, 0' % (sT + 3))
        vUP, vUS = vT + 5, vT + 6
        e('s_mul_i32 s%d, s%d, 15360' % (sT, sW))
        e('s_add_u32 s%d, s%d, 20480' % (sT, sT))
        e('v_subrev_u32 v%d, s%d, v%d' % (vUP, sT, vTPq))
        e('v_subrev_u32 v%d, s%d, v%d' % (vUS, sT, vTSq))
        e('v_add_u32 v%d, 64, v%d' % (vT2, vUP))
        e('v_add_u32 v%d, 64, v%d' % (vT + 4, vUS))
        e('v_cndmask_b32 v%d, v%d, v%d, s[%d:%d]' % (vT2, vT2, vT + 4, sT + 2, sT + 3))
        e('v_add_u32 v%d, 72, v%d' % (vT3, vUP))
        e('v_add_u32 v%d, 96, v%d' % (vT + 4, vUS))
        e('v_cndmask_b32 v%d, v%d, v%d, s[%d:%d]' % (vT3, vT3, vT + 4, sT + 2, sT + 3))
        e.wait(lg=e.last_lg())
        e('s_barrier')
        e.wait(vm=tk['unit'])
        lt = self.tr_reads(vUP, vUS, 0, vUF, file='v', vt2=vT2, vt3=vT3)
        vUR = vXB + 12
        e('v_lshrrev_b32 v%d, 5, v%d' % (t0, vL))
        e('v_and_b32 v%d, 7, v%d' % (t1, vL))
        e('v_xor_b32 v%d, v%d, v%d' % (t0, t0, t1))
        e('v_lshlrev_b32 v%d, 4, v%d' % (t0, t0))
        e('v_lshrrev_b32 v%d, 3, v%d' % (vT + 4, vL))
        e('v_lshl_add_u32 v%d, v%d, 7, v%d' % (t0, vT + 4, t0))
        e('v_add_u32 v%d, s%d, v%d' % (t0, sPW, t0))
        e('v_lshlrev_b32 v%d, 4, v%d' % (t1, t1))
        e('v_lshl_add_u32 v%d, v%d, 12, v%d' % (t1, vT + 4, t1))
        for n in range(5):
            e('v_xor_b32 v%d, %d, v%d' % (vT + 4, ((2 * n) & 7) << 4, t0))
            ut = e.lg('ds_read_b128 %s, v%d offset:%d' % (v(vUR + 4 * n, 4), vT + 4, 5120 + 1024 * n))
        e('s_lshr_b32 s%d, s%d, 1' % (sT, sOWN))
        e('s_mul_i32 s%d, s%d, 640' % (sT, sT))
        e('s_and_b32 s%d, s%d, 1' % (sT + 1, sOWN))
        e('s_mul_i32 s%d, s%d, 40' % (sT + 1, sT + 1))
        e('s_add_u32 s%d, s%d, s%d' % (sT, sT, sT + 1))
        e('s_mul_i32 s%d, s%d, 80' % (sT + 1, sJ))
        e('s_add_u32 s%d, s%d, s%d' % (sT, sT, sT + 1))
        e('s_lshl_b32 s%d, s%d, 12' % (sT, sT))
        e('s_lshl_b32 s%d, s%d, 7' % (sT + 1, sC))
        e('s_sub_u32 s%d, s%d, s%d' % (sT, sT, sT + 1))
        e('s_add_u32 s%d, s%d, 0x%x' % (sT, sT, UU + 4096 - 128))
        e.wait(lg=lt)
        for T in range(5):
            e.vm('buffer_store_dwordx4 %s, v%d, %s, s%d offen sc1' % (v(vUF + 4 * T, 4), vLIN, WS, sDst + T))
        e.wait(lg=ut)
        for n in range(5):
            e.vm('buffer_store_dwordx4 %s, v%d, %s, s%d offen sc1' % (v(vUR + 4 * n, 4), t1, WS, sT))
            if n < 4:
                e('s_add_u32 s%d, s%d, 32768' % (sT, sT))
        self.stamp('prep stored')
        vPA = vT + 4
        e('s_bitcmp1_b32 s%d, 0' % sW)
        e('s_cselect_b32 s%d, 1, -1' % sT)
        e('s_add_u32 s%d, s%d, s%d' % (sT, sT, sC))
        e('s_cmp_lt_u32 s%d, 32' % sT)
        e('s_cselect_b32 s%d, s%d, s%d' % (sT, sT, sC))
        e('s_sub_u32 s%d, s%d, s%d' % (sT, sT, sC))
        e('s_lshl_b32 s%d, s%d, 7' % (sT, sT))
        e('v_bfe_u32 v%d, v%d, 1, 1' % (vPA, vL))
        e('v_mul_lo_u32 v%d, s%d, v%d' % (vPA, sT, vPA))
        e('v_and_b32 v%d, 1, v%d' % (vT + 5, vL))
        e('v_lshl_add_u32 v%d, v%d, 3, v%d' % (vPA, vT + 5, vPA))
        e('s_lshl_b32 s%d, s%d, 7' % (sT, sC))
        e('s_lshl_b32 s%d, s%d, 4' % (sT + 1, sW))
        e('s_add_u32 s%d, s%d, s%d' % (sT, sT, sT + 1))
        e('s_add_u32 s%d, s%d, 0x%x' % (sT, sT, FL))
        e('v_add_u32 v%d, s%d, v%d' % (vPA, sT, vPA))
        ptok = self.poll_issue(vPA, vT + 5)
        vCI = vE + 20
        for i in range(10):
            self.unpack(vCI + 2 * i, vXR + i)
        for i in range(10):
            e('v_pk_fma_f32 %s, %s, v[44:45], v[44:45] op_sel:[0,0,1] op_sel_hi:[1,0,1]' % (P(vCI + 2 * i), P(vCI + 2 * i)))
        vXA = vE
        e('s_lshr_b32 s%d, s%d, 1' % (sT + 5, sW))
        e('s_add_u32 s%d, s%d, 1' % (sT + 5, sT + 5))
        e('s_sub_u32 s%d, 0, s%d' % (sT + 6, sT + 5))
        e('s_bitcmp1_b32 s%d, 0' % sW)
        e('s_cselect_b32 s%d, s%d, s%d' % (sT + 5, sT + 5, sT + 6))
        e('s_lshl_b32 s%d, s%d, 4' % (sT + 7, sT + 5))
        e('s_lshl_b32 s%d, s%d, 6' % (sT + 6, sC))
        e('s_add_u32 s%d, s%d, s%d' % (sT + 5, sT + 5, sT + 6))
        e('v_mov_b32 v%d, 0x%x' % (vT + 8, OOB))
        for q in range(4):
            e('s_lshl_b32 s%d, s%d, 4' % (sT + 6, sMQ + q))
            e('s_add_u32 s%d, s%d, s%d' % (sT + 6, sT + 6, sT + 5))
            e('v_add_u32 v%d, s%d, v%d' % (vT + 7, sT + 6, vR))
            e('s_lshl_b32 s%d, s%d, 8' % (sT + 6, sMQ + q))
            if not pshift:
                e('s_add_u32 s%d, s%d, s%d' % (sT + 6, sT + 6, sT + 7))
            e('v_cmp_gt_u32 vcc, 2048, v%d' % (vT + 7))
            e('v_add_u32 v%d, s%d, v%d' % (vT + 7, sT + 6, vCM))
            e('v_cndmask_b32 v%d, v%d, v%d, vcc' % (vXA + q, vT + 8, vT + 7))
        e('s_mul_i32 s%d, s%d, %d' % (sT, sW, 20 * CH))
        for s_ in range(5):
            e('s_add_u32 s%d, s%d, 0x%x' % (sT + 9 + s_, sT, H1 + s_ * 4 * CH))
        self.poll_check(ptok, vPA, vT + 5)
        self.stamp('h seen')
        xtok = {}
        sH = sT + 9
        hord = [(q, s_) for q in range(4) for s_ in range(5)]
        hst = {'n': 0}

        def ldH(n=1):
            for _ in range(n):
                if hst['n'] < 20:
                    q, s_ = hord[hst['n']]
                    xtok[q, s_] = e.vm('buffer_load_dwordx4 %s, v%d, %s, s%d offen sc1' % (v(vXB + 20 * q + 4 * s_, 4), vXA + q, WS, sH + s_))
                    hst['n'] += 1
        ldH(o.get('x_init', 9))
        for s_ in range(5):
            lt = w_tr(S_W2, s_, 0)
            if s_ < 3:
                ldH(1)
        e.wait(lg=lt)
        e('s_barrier')

        def fa(d):
            e('s_lshl_b32 s%d, s%d, 9' % (d, sJ))
            e('s_lshr_b32 s%d, s%d, 3' % (d + 1, sC))
            e('s_lshl_b32 s%d, s%d, 7' % (d + 1, d + 1))
            e('s_add_u32 s%d, s%d, s%d' % (d, d, d + 1))
            e('s_and_b32 s%d, s%d, 7' % (d + 1, sC))
            e('s_lshl_b32 s%d, s%d, 3' % (d + 1, d + 1))
            e('s_add_u32 s%d, s%d, s%d' % (d, d, d + 1))
            e('s_add_u32 s%d, s%d, 0x%x' % (d, d, FL + 0x4000))
        self.wg_flag(fa, vT + 5)
        vKS = vE + 4
        e('s_cmp_eq_u32 s%d, 0' % sCV)
        e('s_cselect_b32 s%d, 0x%x, 0' % (sT + 6, OOB))
        for cc in range(4):
            e('v_add3_u32 v%d, v%d, %d, s%d' % (vKS + cc, vLIN, 4 + 4 * cc, sT + 6))
        e('v_add_u32 v%d, v%d, v%d' % (vKS + 4, vR, vHQ))
        e('v_lshlrev_b32 v%d, 2, v%d' % (vKS + 4, vKS + 4))
        e('v_subrev_u32 v%d, 60, v%d' % (vKS + 4, vKS + 4))
        sXM = sT + 8
        e('s_cselect_b32 s%d, 0x30000, s%d' % (sXM, sQW))

        def ld_sk(cc, n):
            e('s_add_u32 m0, s%d, %d' % (sXM, 4160 * cc + 64))
            e('s_nop 0')
            tk['sk'] = e.vm('buffer_load_dwordx4 v%d, s[%d:%d], 0 offen offset:%d lds' % (vKS + cc, S_SK, S_SK + 3, 1024 * n))

        def ld_skp():
            tk['skp'] = e.vm('buffer_load_dword v47, v%d, s[%d:%d], 0 offen' % (vKS + 4, S_SK, S_SK + 3))
        e.bg_push(ld_skp, ready=lambda: hst['n'] >= 20)
        for n in range(4):
            for cc in range(4):
                e.bg_push(lambda cc=cc, n=n: ld_sk(cc, n), key=('sk', cc, n), cost=o.get('c_sk', 50))
        vPP = vE + 9
        e('v_bfe_u32 v%d, v%d, 3, 2' % (vPP, vL))
        e('v_lshlrev_b32 v%d, 7, v%d' % (vPP, vPP))
        e('v_and_b32 v%d, 7, v%d' % (vT + 5, vL))
        e('v_lshl_add_u32 v%d, v%d, 3, v%d' % (vPP, vT + 5, vPP))
        e('s_lshl_b32 s%d, s%d, 9' % (sT, sJ))
        e('s_add_u32 s%d, s%d, 0x%x' % (sT, sT, FL + 0x4000))
        e('v_add_u32 v%d, s%d, v%d' % (vPP, sT, vPP))
        sS3 = sT + 17
        e('s_lshl_b32 s%d, s%d, 2' % (sT, sJ))
        e('s_add_u32 s%d, s%d, s%d' % (sT, sT, sW))
        e('s_mul_i32 s%d, s%d, 61440' % (sS3, sT))
        e('s_add_u32 s%d, s%d, 0x%x' % (sS3, sS3, W3P))
        e('s_mul_i32 s%d, s%d, 3' % (sT, sJ))
        e('s_add_u32 s%d, s%d, s%d' % (sT + 1, sT, sW))
        e('s_and_b32 s%d, s%d, 1' % (sHALF, sT + 1))
        e('s_lshr_b32 s%d, s%d, 1' % (sT + 1, sT + 1))
        e('s_lshr_b32 s%d, s%d, 1' % (sT, sT))
        e('s_sub_u32 s%d, s%d, s%d' % (sT, sT + 1, sT))
        e('s_lshl_b32 s%d, s%d, 1' % (sT + 2, sJ))
        e('s_add_u32 s%d, s%d, s%d' % (sT, sT, sT + 2))
        e('s_mul_i32 s%d, s%d, 20480' % (sS3 + 1, sT))
        e('s_add_u32 s%d, s%d, 0x%x' % (sS3 + 1, sS3 + 1, W3H))
        e('s_add_u32 s%d, s%d, 96' % (sS3 + 2, sT + 1))
        e('s_cmp_eq_u32 s%d, 3' % sW)
        e('s_cselect_b32 s%d, 0x%x, s%d' % (sS3 + 1, OOB, sS3 + 1))
        e('s_cselect_b32 s%d, 0, s%d' % (sHALF, sHALF))
        e('s_bitcmp1_b32 s%d, 0' % sCH)
        e('s_cselect_b32 s%d, 16, 0' % (sT + 6))
        e('s_lshr_b32 s%d, s%d, s%d' % (sD, sD, sT + 6))
        e('s_and_b32 s%d, s%d, 0xffff' % (sD, sD))

        self.part = [vXB, vXB + 20, vXB + 40]

        def mid2(ph):
            if ph == 1:
                tk['prep'] = self.poll_issue(vPP, vT + 13)
        e.wait(lg=lt)
        e.bg_on(o.get('per4', 100))
        acc = self.splitk(5, lambda s_, T: a(20 * s_ + 4 * T, 4), lambda q, s_: vXB + 20 * q + 4 * s_, lambda q, s_: xtok[q, s_], cinit=vCI, mid_barrier=mid2, xfree=lambda q, s_: ldH(1))
        e.bg_off()
        self.stamp('P2 mfma')
        self.pack20(acc, vX1P)
        e('s_lshl_b32 s%d, s%d, 6' % (sT + 6, sC))
        e('s_lshl_b32 s%d, s%d, 4' % (sT + 7, sOWN))
        e('s_add_u32 s%d, s%d, s%d' % (sT + 6, sT + 6, sT + 7))
        e('v_add_lshl_u32 v%d, s%d, v%d, 4' % (vRow, sT + 6, vR))
        self.store_tile_cm(vX1P, X1, vRow)
        tq = vXB
        for i in range(0, 20, 2):
            e('v_pk_mul_f32 %s, %s, %s' % (P(tq + i), P(acc + i), P(acc + i)))
        for base in (acc, tq):
            regs = [base + i for i in range(0, 20, 2)]
            while len(regs) > 1:
                nxt = []
                for i in range(0, len(regs) - 1, 2):
                    e('v_pk_add_f32 %s, %s, %s' % (P(regs[i]), P(regs[i]), P(regs[i + 1])))
                    nxt.append(regs[i])
                if len(regs) & 1:
                    nxt.append(regs[-1])
                regs = nxt
            e('v_add_f32 v%d, v%d, v%d' % (base, base, base + 1))
        e('v_permlane32_swap_b32 v%d, v%d' % (acc, tq))
        e('v_add_f32 v%d, v%d, v%d' % (acc, acc, tq))
        e('v_mov_b32 v%d, v%d' % (tq, acc))
        e('v_permlane16_swap_b32 v%d, v%d' % (acc, tq))
        e('v_add_f32 v%d, v%d, v%d' % (acc, acc, tq))
        e('v_lshrrev_b32 v%d, 1, v%d' % (vT + 4, vHQ))
        e('v_lshlrev_b32 v%d, 2, v%d' % (vT + 4, vT + 4))
        e('v_lshl_add_u32 v%d, v%d, 3, v%d' % (vT + 4, vR, vT + 4))
        e('s_lshl_b32 s%d, s%d, 12' % (sT, sC))
        e('s_lshl_b32 s%d, s%d, 9' % (sT + 1, sJ))
        e('s_add_u32 s%d, s%d, s%d' % (sT, sT, sT + 1))
        e('s_lshl_b32 s%d, s%d, 7' % (sT + 1, sOWN))
        e('s_add_u32 s%d, s%d, s%d' % (sT, sT, sT + 1))
        e('s_add_u32 s%d, s%d, 0x%x' % (sT, sT, ST))
        e('s_mov_b32 exec_lo, 0xffff')
        e('s_mov_b32 exec_hi, 0xffff')
        x1tok = e.vm('buffer_store_dword v%d, v%d, %s, s%d offen sc1' % (acc, vT + 4, WS, sT))
        e('s_mov_b64 exec, -1')
        self.stamp('x1 stored')
        e.bg_flush()
        self.poll_check(tk['prep'], vPP, vT + 13)
        self.stamp('prep seen')
        for par in range(2):
            e('s_lshl_b32 s%d, s%d, 12' % (sT, sCH))
            e('s_add_u32 s%d, s%d, 0x%x' % (sT, sT, UU + par * 640 * 4096))
            e('s_cmp_eq_u32 s%d, 0' % sCV)
            e('s_cselect_b32 s%d, 0x%x, s%d' % (sT, OOB, sT))
            e('s_add_u32 m0, s%d, %d' % (sXM, 16640 + 4128 * par))
            for n in range(4):
                utok = e.vm('buffer_load_dwordx4 v%d, %s, s%d offen offset:%d sc1 lds' % (vLIN, WS, sT, 1024 * n))

        def slot(i):
            if i < 39:
                return a(100 + 4 * i, 4)
            if i < 64:
                return a(4 * (i - 39), 4)
            return v(vE + 24 + 4 * (i - 64), 4)

        def w3slot(f):
            return slot(f if f < 72 else f - 72)

        def w4slot(g):
            return slot(g + 8 if g < 64 else g - 64)
        w3tok = {}
        used3 = {'n': 0}

        sR3 = [8, 9, 10, 11]
        e('s_and_b32 s%d, s%d, %d' % (sT, sC, 3 if o.get('rot3', 0) else 0))
        for b_ in range(4):
            e('s_add_u32 s%d, s%d, %d' % (sR3[b_], sT, b_))
            e('s_and_b32 s%d, s%d, 3' % (sR3[b_], sR3[b_]))
            e('s_mul_i32 s%d, s%d, 5120' % (sR3[b_], sR3[b_]))

        def ld_w3(f):
            ps, r_ = divmod(f, 40)
            s_, T = divmod(r_, 2)
            b_, s_ = divmod(s_, 5)
            if ps == 0:
                base, off = sS3, T * 20480 + s_ * 1024
            elif T == 0:
                base, off = sS3, 40960 + s_ * 1024
            else:
                base, off = sS3 + 1, s_ * 1024
            e('s_add_u32 s%d, s%d, s%d' % (sBG, base, sR3[b_]))
            if off & ~0xfff:
                e('s_add_u32 s%d, s%d, %d' % (sBG, sBG, off & ~0xfff))
            w3tok[f] = e.vm('buffer_load_dwordx4 %s, v%d, %s, s%d offen offset:%d sc1' % (w3slot(f), vLIN, WS, sBG, off & 0xfff))
        for f in range(80):
            e.bg_push(lambda f=f: ld_w3(f), ready=(lambda f=f: f - 72 < used3['n']), key=('w3', f), cost=CF)
        e.bg_flush(o.get('w3_a', 8))
        sk = e.lab('L_nocp')
        self.conv_skip(sk)
        e('v_mul_u32_u24 v%d, 4160, v%d' % (vT + 4, vHQ))
        e('v_lshl_add_u32 v%d, v%d, 2, v%d' % (vT + 4, vR, vT + 4))
        e('v_add_u32 v%d, s%d, v%d' % (vT + 4, sQW, vT + 4))
        e.lg('ds_write_b32 v%d, v47' % (vT + 4), counted=False)
        e('v_and_b32 v%d, 3, v%d' % (vT + 4, vL))
        e('v_lshlrev_b32 v%d, 2, v%d' % (vT + 4, vT + 4))
        e('v_bfe_u32 v%d, v%d, 2, 1' % (vT + 5, vL))
        e('v_mul_u32_u24 v%d, 4128, v%d' % (vT + 5, vT + 5))
        e('s_add_u32 s%d, s%d, %d' % (sT + 6, sQW, 16640 + 4096))
        e('v_add3_u32 v%d, v%d, v%d, s%d' % (vT + 4, vT + 4, vT + 5, sT + 6))
        e('v_mov_b32 v%d, 0' % (vT + 5))
        e('s_mov_b64 exec, 0xff')
        e.lg('ds_write_b32 v%d, v%d' % (vT + 4, vT + 5), counted=False)
        e('s_mov_b64 exec, -1')
        e(sk + ':')
        sS4 = sT + 15
        e('s_mul_i32 s%d, s%d, 14' % (sT + 1, sW))
        e('s_cmp_eq_u32 s%d, 3' % sW)
        e('s_cselect_b32 s%d, 41, s%d' % (sT + 1, sT + 1))
        e('s_mov_b32 s%d, s%d' % (sT + 9, sT + 1))
        e('s_mul_i32 s%d, s%d, 5120' % (sS4, sT + 1))
        e('s_mul_i32 s%d, s%d, 286720' % (sT + 1, sJ))
        e('s_add_u32 s%d, s%d, s%d' % (sS4, sS4, sT + 1))
        e('s_add_u32 s%d, s%d, 0x%x' % (sS4, sS4, W4P))
        tabW = list(range(12, 26))
        tabH = list(range(26, 32)) + list(range(40, 48))
        e('s_and_b32 s%d, s%d, %d' % (sT + 1, sC, 3 if o.get('rot4', 0) else 0))
        e('s_mul_i32 s%d, s%d, 7' % (sT + 1, sT + 1))
        e('s_add_u32 s%d, s%d, 1' % (sT + 1, sT + 1))
        e('s_lshr_b32 s%d, s%d, 1' % (sT + 1, sT + 1))
        e('s_cmp_ge_u32 s%d, 2' % sW)
        e('s_cselect_b32 s%d, 13, 14' % (sT + 3))
        for i in range(14):
            e('s_mul_i32 s%d, s%d, 5120' % (tabW[i], sT + 1))
            e('s_mul_i32 s%d, s%d, %d' % (tabH[i], sT + 1, 4 * CH))
            e('s_add_u32 s%d, s%d, s%d' % (tabW[i], tabW[i], sS4))
            e('s_cmp_ge_u32 s%d, s%d' % (sT + 1, sT + 3))
            e('s_cselect_b32 s%d, 0x%x, s%d' % (tabW[i], OOB, tabW[i]))
            e('s_cselect_b32 s%d, 0x%x, s%d' % (tabH[i], OOB, tabH[i]))
            if i < 13:
                e('s_add_u32 s%d, s%d, 1' % (sT + 1, sT + 1))
                e('s_cmp_eq_u32 s%d, 14' % (sT + 1))
                e('s_cselect_b32 s%d, 0, s%d' % (sT + 1, sT + 1))
        e.wait(vm=x1tok)
        e('s_barrier')
        self.wg_flag(self.row_flag_fn(1), vT + 5)
        self.stamp('x1 flagged')
        if self.stop <= 2:
            return self.finish()

        na = o.get('conv_a', 3)
        e.wait(vm=utok)
        e.wait_all(vm=False)
        if o.get('finec'):
            self.stamp('U landed')
        vP8 = vT + 4
        sP8 = sT + 7

        def w3poll(ph):
            def f():
                sk = e.lab('L_nw3')
                e('s_cmp_lg_u32 s%d, 3' % sW)
                e('s_cbranch_scc1 ' + sk)
                e('s_lshl_b32 s%d, s%d, 7' % (sP8, sC))
                e('s_add_u32 s%d, s%d, 0x%x' % (sP8, sP8, FL + ph * 4096))
                e('v_lshlrev_b32 v%d, 3, v%d' % (vP8, vL))
                self.poll(vP8, 8, vT + 5, soff='s%d' % sP8)
                e(sk + ':')
            return f
        e.bg_on(o.get('per5', 100), budget=o.get('w3_b', 14))
        e.two_paths(self.conv_skip, lambda: self.conv_part(0, na, True, False), w3poll(1))
        e.bg_off()
        self.stamp('conv a')
        e('s_barrier')
        self.stamp('x1 seen')
        vS8 = vACC
        e('v_lshlrev_b32 v%d, 3, v%d' % (vT + 4, vL))
        e('s_lshl_b32 s%d, s%d, 12' % (sT, sC))
        e('s_add_u32 s%d, s%d, 0x%x' % (sT, sT, ST))
        for jj in range(8):
            sttok = e.vm('buffer_load_dwordx2 %s, v%d, %s, s%d offen offset:%d sc1' % (v(vS8 + 2 * jj, 2), vT + 4, WS, sT, 512 * jj))
        e('s_mul_i32 s%d, s%d, %d' % (sT, sW, 20 * CH))
        xtok = {}
        sX1 = sT + 16
        e('s_add_u32 s%d, s%d, 0x%x' % (sX1, sT, X1))
        xst = {'n': 0}

        def ldX1(n=1):
            for _ in range(n):
                if xst['n'] < 20:
                    s_, mt = divmod(xst['n'], 4)
                    e('s_add_u32 s%d, s%d, %d' % (sBG, sX1, s_ * 4 * CH))
                    xtok[s_, mt] = e.vm('buffer_load_dwordx4 %s, v%d, %s, s%d offen offset:%d sc1' % (v(vXB + 16 * s_ + 4 * mt, 4), vCM, WS, sBG, 256 * mt))
                    xst['n'] += 1
        ldX1(o.get('x1_init', 6))
        vXa, vXb = vT + 4, vT + 5
        vHA = vT + 8
        vXW = vT + 10
        e('s_lshl_b32 s%d, s%d, 11' % (sT, sHALF))
        e('v_add_u32 v%d, s%d, v%d' % (vXa, sT, vLIN))
        e('s_sub_u32 s%d, 2048, s%d' % (sT, sT))
        e('v_add_u32 v%d, s%d, v%d' % (vXb, sT, vLIN))
        e('s_lshl_b32 s%d, s%d, 2' % (sT, sJ))
        e('s_add_u32 s%d, s%d, s%d' % (sT, sT, sW))
        e('s_mul_i32 s%d, s%d, %d' % (sT, sT, 6 * CH))
        sHS = sT + 10
        for sl in range(4):
            e('s_lshl_b32 s%d, s%d, 1' % (sT + 1, sHALF))
            e('s_xor_b32 s%d, s%d, %d' % (sT + 1, sT + 1, sl))
            e('s_lshl_b32 s%d, s%d, 8' % (sT + 1, sT + 1))
            e('s_add_u32 s%d, s%d, s%d' % (sHS + sl, sT + 1, sT))
            e('s_add_u32 s%d, s%d, 0x%x' % (sHS + sl, sHS + sl, HH))
        e('s_mul_i32 s%d, s%d, %d' % (sHS + 4, sS3 + 2, 2 * CH))
        e('s_sub_u32 s%d, s%d, s%d' % (sHS + 4, sHS + 4, sT))
        e('s_cmp_eq_u32 s%d, 3' % sW)
        e('s_cselect_b32 s%d, 0x%x, s%d' % (sHS + 4, OOB, sHS + 4))
        e('v_lshrrev_b32 v%d, 1, v%d' % (vHA + 1, vHQ))
        e('v_sub_u32 v%d, v%d, v%d' % (vHA + 1, vHA + 1, vHQ))
        e('v_lshlrev_b32 v%d, 15, v%d' % (vHA + 1, vHA + 1))
        e('v_add_u32 v%d, v%d, v%d' % (vHA + 1, vHA + 1, vCM))
        e('v_and_b32 v%d, 1, v%d' % (vHA, vHQ))
        e('v_lshl_add_u32 v%d, v%d, 3, v%d' % (vHA + 1, vHA, vHA + 1))
        e('s_mul_i32 s%d, s%d, 20480' % (sT + 2, sW))
        e('v_add_u32 v%d, s%d, v%d' % (vXW, sT + 2, vLIN))
        w4tok = {}

        def ld_w4(g):
            i_, T = divmod(g, 5)
            if T < 4:
                w4tok[g] = e.vm('buffer_load_dwordx4 %s, v%d, %s, s%d offen offset:%d sc1' % (w4slot(g), vLIN, WS, tabW[i_], 1024 * T))
            else:
                e('s_add_u32 s%d, s%d, 4096' % (sBG, tabW[i_]))
                w4tok[g] = e.vm('buffer_load_dwordx4 %s, v%d, %s, s%d offen sc1' % (w4slot(g), vLIN, WS, sBG))
        for g in range(70):
            e.bg_push(lambda g=g: ld_w4(g), ready=(lambda g=g: (g + 8 if g < 64 else g + 8) < used3['n']), key=('w4', g), cost=CF)
        ldX1(4)
        e.wait(vm=sttok)
        for i in range(0, 8, 2):
            e('v_pk_add_f32 %s, %s, %s' % (P(vS8 + i), P(vS8 + i), P(vS8 + 8 + i)))
        e('v_pk_add_f32 %s, %s, %s' % (P(vS8), P(vS8), P(vS8 + 2)))
        e('v_pk_add_f32 %s, %s, %s' % (P(vS8 + 4), P(vS8 + 4), P(vS8 + 6)))
        e('v_pk_add_f32 %s, %s, %s' % (P(vS8), P(vS8), P(vS8 + 4)))
        b = vS8
        e('s_mov_b32 s%d, %s' % (sT + 2, f2h(1.0 / 640)))
        e('s_mov_b32 s%d, %s' % (sT + 3, f2h(EPS)))
        e('v_mul_f32 v%d, s%d, v%d' % (b, sT + 2, b))
        e('v_mul_f32 v%d, s%d, v%d' % (b + 1, sT + 2, b + 1))
        e('v_fma_f32 v%d, -v%d, v%d, v%d' % (b + 1, b, b, b + 1))
        e('v_max_f32 v%d, 0, v%d' % (b + 1, b + 1))
        e('v_add_f32 v%d, s%d, v%d' % (b + 1, sT + 3, b + 1))
        e('v_rsq_f32 v%d, v%d' % (b + 1, b + 1))
        e('v_mul_f32 v%d, -v%d, v%d' % (b, b, b + 1))
        vPR = vS8 + 8
        for src, k in ((b + 1, 0), (b, 1)):
            d = [vPR + 2 * mt + k for mt in range(4)]
            e('v_mov_b32 v%d, v%d' % (d[0], src))
            e('v_mov_b32 v%d, v%d' % (d[1], src))
            e('v_permlane16_swap_b32 v%d, v%d' % (d[0], d[1]))
            e('v_mov_b32 v%d, v%d' % (d[2], d[0]))
            e('v_mov_b32 v%d, v%d' % (d[3], d[1]))
            e('v_permlane32_swap_b32 v%d, v%d' % (d[0], d[2]))
            e('v_permlane32_swap_b32 v%d, v%d' % (d[1], d[3]))
        ldX1(2)
        for s_ in range(5):
            for mt in range(4):
                if xst['n'] < 20:
                    ldX1(1)
                elif not e.bg_period:
                    e.bg_on(o.get('per6', 100))
                e.wait(vm=xtok[s_, mt])
                r0 = vXB + 16 * s_ + 4 * mt
                self.normalize([r0 + i for i in range(4)], vPR + 2 * mt, vACC + 16)
                e.lg('ds_write_b128 v%d, %s offset:%d' % (vXW, v(r0, 4), (4 * s_ + mt) * 1024))
        e.wait(lg=e.last_lg())
        e('s_barrier')
        self.stamp('X staged')

        vA1 = vXB
        vA2 = vXB + 32
        vXF = vACC
        vG = vXB + 56
        LEAD = o.get('lead', 14)

        def rdX(s_, sl):
            b_, k_ = divmod(s_, 5)
            base = vT + 6 + (sl >> 1)
            if k_ == 0 and not (sl & 1):
                e('v_lshl_add_u32 v%d, s%d, 2, v%d' % (base, sR3[b_], vXa if sl < 2 else vXb))
            off = 4096 * k_ + 1024 * (sl & 1)
            return e.lg('ds_read_b128 %s, v%d offset:%d' % (v(vXF + 16 * (s_ & 1) + 4 * sl, 4), base, off))
        e.bg_on(o.get('per7', 100))
        xt = {}
        for sl in range(4):
            xt[0, sl] = rdX(0, sl)
        for s_ in range(20):
            e.bg_need(('w3', min(2 * s_ + 1 + LEAD, 71)))
            for sl in range(4):
                if sl == 0:
                    e.wait(vm=w3tok[2 * s_ + 1])
                e.wait(lg=xt[s_, sl])
                for T in range(2):
                    ac = v(vA1 + 8 * sl + 4 * T, 4)
                    e('v_mfma_f32_16x16x32_bf16 %s, %s, %s, %s' % (ac, w3slot(2 * s_ + T), v(vXF + 16 * (s_ & 1) + 4 * sl, 4), '0' if s_ == 0 else ac))
                    if sl == 3 and T == 1:
                        used3['n'] = 2 * s_ + 2
                    if T == 0:
                        xt[s_ + 1, sl] = rdX((s_ + 1) % 20, sl)
        self.stamp('P3 pass1')
        work = []
        for sl in range(4):
            els = [vA1 + 8 * sl + i for i in range(8)]
            seqs = [self.gelu_ops(z, vG + i) for i, z in enumerate(els)]
            for k in range(7):
                for sq in seqs:
                    work.append(sq[k])
            for i in range(4):
                work.append('v_cvt_pk_bf16_f32 v%d, v%d, v%d' % (vG + 8 + 4 * (sl & 1) + i, els[2 * i], els[2 * i + 1]))
            work.append(('st', 'buffer_store_dwordx4 %s, v%d, %s, s%d offen sc1' % (v(vG + 8 + 4 * (sl & 1), 4), vCM, WS, sHS + sl)))

        def do_work(n):
            for _ in range(n):
                if not work:
                    return
                it = work.pop(0)
                if isinstance(it, tuple):
                    e.vm(it[1])
                else:
                    e(it)
        xt2 = {(0, sl): xt[20, sl] for sl in range(4)}
        stop_at = o.get('bgstop3', 16)
        for s_ in range(20):
            f0 = 40 + 2 * s_
            e.bg_need(('w3', min(f0 + 1 + LEAD, 79)))
            if s_ == stop_at:
                e.bg_off()
            for sl in range(4):
                if sl == 0:
                    e.wait(vm=w3tok[f0 + 1])
                e.wait(lg=xt2[s_, sl])
                xf = v(vXF + 16 * (s_ & 1) + 4 * sl, 4)
                ac = v(vA2 + 4 * sl, 4)
                e('v_mfma_f32_16x16x32_bf16 %s, %s, %s, %s' % (ac, w3slot(f0), xf, '0' if s_ == 0 else ac))
                if sl == 3:
                    used3['n'] = f0 + 2
                if s_ < 19:
                    xt2[s_ + 1, sl] = rdX(s_ + 1, sl)
                if s_ > 0:
                    do_work(1 if sl < 2 else 2)
                if sl < 2:
                    ac = v(vA2 + 16 + 4 * sl, 4)
                    e('v_mfma_f32_16x16x32_bf16 %s, %s, %s, %s' % (ac, w3slot(f0 + 1), xf, '0' if s_ == 0 else ac))
                    if s_ > 0:
                        do_work(3)
        do_work(1000)
        e.bg_off()
        self.stamp('P3 pass2')
        self.gelu_pk(vA2, 24, vA1)
        for i in range(12):
            e('v_cvt_pk_bf16_f32 v%d, v%d, v%d' % (vA1 + i, vA2 + 2 * i, vA2 + 2 * i + 1))
        for sl in range(4):
            e('s_add_u32 s%d, s%d, %d' % (sT + 1, sHS + sl, 4 * CH))
            Htok = e.vm('buffer_store_dwordx2 %s, v%d, %s, s%d offen sc1' % (v(vA1 + 2 * sl, 2), vHA + 1, WS, sT + 1))
        for sl in range(2):
            e('s_add_u32 s%d, s%d, s%d' % (sT + 1, sHS + sl, sHS + 4))
            Htok = e.vm('buffer_store_dwordx2 %s, v%d, %s, s%d offen sc1' % (v(vA1 + 8 + 2 * sl, 2), vHA + 1, WS, sT + 1))
        self.stamp('H stored')

        nb1 = o.get('conv_b1', 2)

        def h_event():
            e.wait(vm=Htok)
            e('s_barrier')
            self.wg_flag(self.row_flag_fn(2), vT + 13)
            self.stamp('H flagged')
        e.bg_on(o.get('per8', 100), budget=o.get('w4_b', 100))
        e.two_paths(self.conv_skip, lambda: self.conv_part(na, 8 - na, False, True, event=(nb1, h_event)), w3poll(2))
        e.bg_off()
        self.stamp('conv b')
        e.bg_flush(o.get('w4_c', 0))
        vCI = vE
        for i in range(10):
            self.unpack(vCI + 2 * i, vX1P + i)
        NR = 20
        order = [(q, s_) for q in range(4) for s_ in range(14)]
        xtok = {}
        sXq = sT + 10
        e('s_mul_i32 s%d, s%d, %d' % (sT, sT + 9, 4 * CH))
        e('s_add_u32 s%d, s%d, 0x%x' % (sT, sT, HH))
        for q in range(4):
            e('s_lshl_b32 s%d, s%d, 8' % (sT + 1, sMQ + q))
            e('s_add_u32 s%d, s%d, s%d' % (sXq + q, sT + 1, sT))
        self.vYr = [vCACC + 20 + i for i in range(12)] + [vX1P + i for i in range(8)]
        vPY, vYD, vYL = vT + 9, vT + 10, vT + 11
        e('v_min_u32 v%d, 19, v%d' % (vPY, vL))
        e('s_mul_i32 s%d, s%d, 20' % (sT, sW))
        e('v_add_u32 v%d, s%d, v%d' % (vPY, sT, vPY))
        e('v_lshrrev_b32 v%d, 3, v%d' % (vYD, vPY))
        e('v_and_b32 v%d, 7, v%d' % (vPY, vPY))
        e('v_lshlrev_b32 v%d, 3, v%d' % (vPY, vPY))
        e('v_lshl_add_u32 v%d, v%d, 7, v%d' % (vPY, vYD, vPY))
        e('s_lshl_b32 s%d, s%d, 11' % (sT + 1, sJ))
        e('s_add_u32 s%d, s%d, 0x%x' % (sT + 1, sT + 1, FL + 0x8000))
        e('v_add_u32 v%d, s%d, v%d' % (vPY, sT + 1, vPY))
        e('s_mul_i32 s%d, s%d, 80' % (sT + 1, sJ))
        e('s_add_u32 s%d, s%d, s%d' % (sT, sT, sT + 1))
        e('s_lshl_b32 s%d, s%d, 12' % (sT, sT))
        e('s_lshl_b32 s%d, s%d, 7' % (sT + 1, sC))
        e('s_add_u32 s%d, s%d, s%d' % (sT, sT, sT + 1))
        e('s_add_u32 s%d, s%d, 0x%x' % (sT, sT, YT))
        e('v_lshrrev_b32 v%d, 3, v%d' % (vYD, vL))
        e('v_lshlrev_b32 v%d, 12, v%d' % (vYD, vYD))
        e('v_and_b32 v%d, 7, v%d' % (vYL, vL))
        e('v_lshl_add_u32 v%d, v%d, 4, v%d' % (vYD, vYL, vYD))
        e('v_add_u32 v%d, s%d, v%d' % (vYD, sT, vYD))
        e('v_and_b32 v%d, 8, v%d' % (vYL, vR))
        e('v_and_b32 v%d, 1, v%d' % (vT + 12, vR))
        e('v_lshl_add_u32 v%d, v%d, 2, v%d' % (vYL, vT + 12, vYL))
        e('v_bfe_u32 v%d, v%d, 1, 2' % (vT + 12, vR))
        e('s_lshl_b32 s%d, s%d, 4' % (sT, sOWN))
        e('s_add_u32 s%d, s%d, %d' % (sT, sT, 61440 // 2))
        e('v_add3_u32 v%d, v%d, v%d, s%d' % (vYL, vYL, vT + 12, sT))
        e('v_lshlrev_b32 v%d, 1, v%d' % (vYL, vYL))
        e('v_lshl_add_u32 v%d, v%d, 9, v%d' % (vT + 12, vHQ, vYL))
        e('v_lshl_add_u32 v%d, v%d, 10, v%d' % (vYL, vHQ, vYL))
        e('s_barrier')
        self.stamp('H seen')

        def ldX(i):
            q, s_ = order[i]
            e('s_add_u32 s%d, s%d, s%d' % (sBG, sXq + q, tabH[s_]))
            xtok[q, s_] = e.vm('buffer_load_dwordx4 %s, v%d, %s, s%d offen sc1' % (v(vXB + 4 * (i % NR), 4), vCM, WS, sBG))
        NI = o.get('h_init', 12)
        WL = o.get('w4_lead', 3)
        for i in range(NI):
            if i < WL:
                e.bg_need(('w4', 5 * i + 4))
            ldX(i)
        for r_ in self.vYr:
            e('v_mov_b32 v%d, 0' % r_)
        st = {'n': NI}
        ypoll_at = o.get('ypoll', (1, 10))
        ychk_at = o.get('ychk', (2, 6))

        def xfree(q, s_):
            if q == 0:
                e.bg_need(('w4', min(5 * (s_ + WL) + 4, 69)))
            if st['n'] < 56:
                ldX(st['n'])
                st['n'] += 1
            if (q, s_) == (0, 0):
                self.y_flag()
            if (q, s_) == tuple(ypoll_at):
                tk['y'] = self.poll_issue(vPY, vT + 13)
            if (q, s_) == tuple(ychk_at):
                self.poll_check(tk['y'], vPY, vT + 13)
                e('s_mul_i32 s%d, s%d, 2560' % (sT, sW))
                e('s_add_u32 s%d, s%d, 61440' % (sT, sT))
                for n in range(3):
                    e('s_add_u32 m0, s%d, %d' % (sT, 1024 * n))
                    e('s_mov_b32 s%d, %d' % (sT + 1, 32768 * n))
                    if n == 2:
                        e('s_mov_b32 exec_hi, 0')
                    tk['yd'] = e.vm('buffer_load_dwordx4 v%d, %s, s%d offen sc1 lds' % (vYD, WS, sT + 1))
                e('s_mov_b64 exec, -1')

        def mid4(ph):
            if ph == 0:
                e.wait(vm=tk['yd'])
            else:
                for T in range(5):
                    for r_ in range(4):
                        col = (32 * (T >> 1) + 4 * (T & 1) + r_) if T < 4 else 64 + r_
                        e.lg('ds_read_u16_d16_hi v%d, v%d offset:%d' % (self.vYr[4 * T + r_], vYL if T < 4 else vT + 12, col * 128))
        class XT(dict):
            def __getitem__(self, k):
                t = dict.__getitem__(self, k)
                if k[0] == 0:
                    t = max(t, w4tok[5 * k[1] + 4])
                return t
        xt4 = XT()
        xtok_real = xtok

        class XV:
            def __getitem__(s2, k):
                t = xtok_real[k]
                if k[0] == 0:
                    t = max(t, w4tok[5 * k[1] + 4])
                return t
        acc = self.splitk4(w4slot, XV(), NR, vCI, xfree, mid4)
        self.stamp('P4 mfma')
        tg = vXB
        e('s_mov_b32 s%d, %s' % (sT + 2, f2h(-math.log2(math.e))))
        for i in range(0, 20, 2):
            e('v_pk_mul_f32 %s, %s, s[%d:%d] op_sel_hi:[1,0]' % (P(tg + i), P(acc + i), sT + 2, sT + 3))
        for i in range(20):
            e('v_exp_f32 v%d, v%d' % (tg + i, tg + i))
        for i in range(0, 20, 2):
            e('v_pk_add_f32 %s, %s, 1.0 op_sel_hi:[1,0]' % (P(tg + i), P(tg + i)))
        for i in range(20):
            e('v_rcp_f32 v%d, v%d' % (tg + i, tg + i))
        for i in range(0, 20, 2):
            e('v_pk_mul_f32 %s, %s, %s' % (P(acc + i), P(acc + i), P(tg + i)))
        xu = vXB + 20
        xn = vXB + 40
        for i in range(10):
            self.unpack(xu + 2 * i, vXR + i)
        for i in range(10):
            e('v_pk_fma_f32 %s, %s, v[44:45], v[44:45] op_sel:[0,0,1] op_sel_hi:[1,0,1]' % (P(xn + 2 * i), P(xu + 2 * i)))
        for i in range(0, 20, 2):
            e('v_pk_mul_f32 %s, %s, %s' % (P(xn + i), P(xn + i), P(self.vYr[i])))
        for i in range(0, 20, 2):
            e('v_pk_fma_f32 %s, %s, %s, %s' % (P(acc + i), P(acc + i), P(xn + i), P(xu + i)))
        self.pack20(acc, tg)
        va = vT + 4
        e('v_mul_u32_u24 v%d, 1280, v%d' % (va, vR))
        e('v_lshl_add_u32 v%d, v%d, 3, v%d' % (va + 1, vHQ, va))
        e('v_lshl_add_u32 v%d, v%d, 4, v%d' % (va, vHQ, va))
        e('s_lshl_b32 s%d, s%d, 6' % (sT, sC))
        e('s_lshl_b32 s%d, s%d, 4' % (sT + 1, sOWN))
        e('s_add_u32 s%d, s%d, s%d' % (sT, sT, sT + 1))
        e('s_mul_i32 s%d, s%d, 1280' % (sT, sT))
        e('s_mul_i32 s%d, s%d, 160' % (sT + 1, sJ))
        e('s_add_u32 s%d, s%d, s%d' % (sT, sT, sT + 1))
        O = 's[%d:%d]' % (S_OUT, S_OUT + 3)
        e.vm('buffer_store_dwordx4 %s, v%d, %s, s%d offen' % (v(tg, 4), va, O, sT))
        e.vm('buffer_store_dwordx4 %s, v%d, %s, s%d offen offset:64' % (v(tg + 4, 4), va, O, sT))
        e.vm('buffer_store_dwordx2 %s, v%d, %s, s%d offen offset:128' % (v(tg + 8, 2), va + 1, O, sT))
        self.stamp('out stored')
        return self.finish()

    def _rd_wrap(self, rdX, sl):
        return rdX(0, sl)

    def splitk4(self, w4slot, xtok, NR, vCI, xfree, mid4):
        class PartMap(int):
            pass
        e = self.e
        p2 = [vXB + 64, vXB + 68, vXB + 72, vXB + 76, vE + 20]
        self.part_override = p2
        return self.splitk_gen(14, lambda s_, T: w4slot(5 * s_ + T), lambda q, s_: vXB + 4 * ((14 * q + s_) % NR), lambda q, s_: xtok[q, s_],
                               vCI, xfree, mid4, [[vCACC + 4 * T for T in range(5)], [vACC + 4 * T for T in range(5)], p2])

    def splitk_gen(self, ns, wreg, xreg, xtok, cinit, xfree, mid_barrier, parts):
        e = self.e
        vWr = vT + 0
        vRd = vT + 1
        e('v_add_u32 v%d, s%d, v%d' % (vWr, sPW, vLIN))
        for q in range(3):
            e('s_sub_u32 s%d, s%d, %d' % (sT, sMQ + 3, 1 + q))
            e('s_and_b32 s%d, s%d, 3' % (sT, sT))
            e('s_mul_i32 s%d, s%d, 15360' % (sT, sT))
            e('s_add_u32 s%d, s%d, %d' % (sT, sT, 5120 * q))
            e('v_add_u32 v%d, s%d, v%d' % (vRd + q, sT, vLIN))
        pend = []
        if self.o.get('fine'):
            self.stamp('pre')
        for q in range(4):
            acc = vACC + 20 * (q & 1)
            cnt = 0
            for s_ in range(ns):
                t = xtok(q, s_)
                if t is not None:
                    e.wait(vm=t)
                if self.o.get('fine') and q == 0 and s_ == 0:
                    self.stamp('first')
                for T in range(5):
                    if s_ == 0:
                        cin = '0' if (q < 3 or cinit is None) else v(cinit + 4 * T, 4)
                    else:
                        cin = v(acc + 4 * T, 4)
                    e('v_mfma_f32_16x16x32_bf16 %s, %s, %s, %s' % (v(acc + 4 * T, 4), wreg(s_, T), v(xreg(q, s_), 4), cin))
                    cnt += 1
                    if cnt >= 5 and pend:
                        pend.pop(0)()
                if xfree is not None:
                    xfree(q, s_)
            while pend:
                pend.pop(0)()
            if self.o.get('fine'):
                self.stamp('q%d' % q)
            if q < 3:
                for T in range(5):
                    pend.append(lambda acc=acc, T=T, q=q: e.lg('ds_write_b128 v%d, %s offset:%d' % (vWr, v(acc + 4 * T, 4), 5120 * q + 1024 * T)))
                if q == 2:
                    def bar():
                        mid_barrier(0)
                        e.wait(lg=e.last_lg())
                        e('s_barrier')
                        mid_barrier(1)
                    pend.append(bar)
                    for qq in range(3):
                        for T in range(5):
                            pend.append(lambda qq=qq, T=T: e.lg('ds_read_b128 %s, v%d offset:%d' % (v(parts[qq][T], 4), vRd + qq, 1024 * T)))
        acc = vACC + 20
        e.wait(lg=e.last_lg())
        P = lambda r: 'v[%d:%d]' % (r, r + 1)
        for k in (1, 2):
            for T in range(5):
                for i in (0, 2):
                    e('v_pk_add_f32 %s, %s, %s' % (P(parts[0][T] + i), P(parts[0][T] + i), P(parts[k][T] + i)))
        for T in range(5):
            for i in (0, 2):
                e('v_pk_add_f32 %s, %s, %s' % (P(acc + 4 * T + i), P(acc + 4 * T + i), P(parts[0][T] + i)))
        return acc

    def text(self):
        self.build()
        self.e('L_end:')
        self.e('s_endpgm')
        body = self.e.finalize()
        hdr = open('recurrent_scan__ssm_conv_h3__mixer_s_mlp__prompt.s.ref').read().split('; Override launch')[0]
        out = hdr
        out += '; Fused single-launch kernel: 32 row clusters x 8 column slices, one workgroup per CU.\n'
        out += '; @launch grid=(256,1,1) block=(256,1,1) lds=163840\n'
        out += '.amdgcn_target "amdgcn-amd-amdhsa--gfx950"\n.text\n'
        out += '.globl %s\n.p2align 8\n.type %s,@function\n%s:\n' % (NAME, NAME, NAME)
        out += body
        out += '''.section .rodata,"a"
.p2align 6
.amdhsa_kernel %s
  .amdhsa_next_free_vgpr 512
  .amdhsa_next_free_sgpr 102
  .amdhsa_accum_offset 256
  .amdhsa_group_segment_fixed_size 0
  .amdhsa_kernarg_size 112
  .amdhsa_user_sgpr_count 2
  .amdhsa_user_sgpr_kernarg_segment_ptr 1
  .amdhsa_system_sgpr_workgroup_id_x 1
  .amdhsa_float_denorm_mode_32 3
.end_amdhsa_kernel
''' % NAME
        return out


if __name__ == '__main__':
    import argparse, json
    ap = argparse.ArgumentParser()
    ap.add_argument('-o', default='k.s')
    ap.add_argument('--stop', type=int, default=99)
    ap.add_argument('--prof', action='store_true')
    ap.add_argument('--opts', default='{}')
    A = ap.parse_args()
    g = Gen(stop=A.stop, prof=A.prof, opts=json.loads(A.opts))
    t = g.text()
    open(A.o, 'w').write(t)
    if A.prof:
        open(A.o + '.names', 'w').write('\n'.join(g.names))
    print('instructions:', sum(1 for x in g.e.out if x.kind != 'none'))
```
